```python
import torch

def _softmax(x, axis=-1):
    return torch.softmax(x, dim=axis)
def _gelu(x):
    return torch.nn.functional.gelu(x, approximate="tanh")
def _silu(x):
    return torch.nn.functional.silu(x)
def _sigmoid(x):
    return torch.sigmoid(x)
def _layernorm(x, axis=-1, eps=1e-5):
    m = x.mean(dim=axis, keepdim=True)
    v = x.var(dim=axis, keepdim=True, unbiased=False)
    return (x - m) / torch.sqrt(v + eps)
def _scatter_add(tgt, idx, src, axis=0):
    return tgt.clone().index_add_(axis, idx, src)
def _segment_sum(src, seg, n):
    out = torch.zeros((n,) + src.shape[1:], dtype=src.dtype)
    return out.index_add_(0, seg, src)
def _pad(x, pw):
    flat = tuple(v for pair in reversed(pw) for v in pair)
    return torch.nn.functional.pad(x, flat)

kernel_name = 'concat_heads__grouped_kv_mqa__ssm_conv_s4d__prompt'

def setup_inputs():

    _w = (lambda a: (lambda t: t.to(torch.bfloat16) if t.is_floating_point() else t)(torch.as_tensor(a)))
    def _A_setup():
        B, S, D, H = 1, 2048, 640, 32
        Dh = D // H
        return {
            "x": _w((lambda *s: torch.randn(*s, dtype=torch.bfloat16) * 0.05)(B, S, D)),
            "wq": _w((lambda *s: torch.randn(*s, dtype=torch.bfloat16) * 0.8)(D, H * Dh)),
            "wk": _w((lambda *s: torch.randn(*s, dtype=torch.bfloat16) * 0.8)(D, Dh)),
            "wv": _w((lambda *s: torch.randn(*s, dtype=torch.bfloat16) * 0.05)(D, Dh)),
            "wo": _w((lambda *s: torch.randn(*s, dtype=torch.bfloat16) * 0.05)(H * Dh, D)),
        }
    _A_in = _A_setup()

    def _B_setup():
        Bsz, L, D, N = 1, 2048, 640, 128
        return {
            "u": _w((lambda *s: torch.randn(*s, dtype=torch.bfloat16) * 0.05)(Bsz, L, D)),
            "log_A_real": _w((lambda *s: torch.randn(*s, dtype=torch.bfloat16) * 6.4)(D, N) * 0.5),
            "A_imag": _w((lambda *s: torch.randn(*s, dtype=torch.bfloat16) * 0.05)(D, N) * 3.14),
            "C_real": _w((lambda *s: torch.randn(*s, dtype=torch.bfloat16) * 0.05)(D, N) / N ** 0.5),
            "C_imag": _w((lambda *s: torch.randn(*s, dtype=torch.bfloat16) * 0.05)(D, N) / N ** 0.5),
            "log_dt": _w((lambda *s: torch.randn(*s, dtype=torch.bfloat16) * 0.05)(D) * 0.5 - 4.0),
            "D_skip": _w((lambda *s: torch.randn(*s, dtype=torch.bfloat16) * 0.05)(D)),
        }
    _B_in = _B_setup()

    return {
        "A_x": _A_in["x"],
        "A_wq": _A_in["wq"],
        "A_wk": _A_in["wk"],
        "A_wv": _A_in["wv"],
        "A_wo": _A_in["wo"],
        "B_u": _B_in["u"],
        "B_log_A_real": _B_in["log_A_real"],
        "B_A_imag": _B_in["A_imag"],
        "B_C_real": _B_in["C_real"],
        "B_C_imag": _B_in["C_imag"],
        "B_log_dt": _B_in["log_dt"],
        "B_D_skip": _B_in["D_skip"],
    }

def reference(A_x, A_wq, A_wk, A_wv, A_wo, B_u, B_log_A_real, B_A_imag, B_C_real, B_C_imag, B_log_dt, B_D_skip):
    def _A_ref(x, wq, wk, wv, wo):
        B, S, D = x.shape
        H = 32
        Dh = D // H
        q = (lambda x, *d: x.permute(*d))((x @ wq).reshape(B, S, H, Dh), 0, 2, 1, 3)
        k = x @ wk
        v = x @ wv
        scores = torch.einsum("bhqd,bkd->bhqk", q, k) * (Dh ** -0.5)
        p = _softmax(scores, axis=-1)
        o = torch.einsum("bhqk,bkd->bhqd", p, v)
        return (lambda x, *d: x.permute(*d))(o, 0, 2, 1, 3).reshape(B, S, H * Dh) @ wo

    def _B_ref(u, log_A_real, A_imag, C_real, C_imag, log_dt, D_skip):
        L = u.shape[1]
        dt = torch.exp(log_dt)
        A = -torch.exp(log_A_real) + 1j * A_imag
        C = (C_real + 1j * C_imag) * dt[:, None]
        pos = (lambda x, dt: x.to(dt))(torch.arange(L), log_dt.dtype)
        P = torch.exp((A * dt[:, None])[:, :, None] * pos[None, None, :])
        K = 2.0 * torch.einsum("dn,dnl->dl", C, P).real
        L2 = 2 * L
        u_t = (lambda x, *d: x.permute(*d))(u, 0, 2, 1)
        Kf = (lambda x, *a, **k: torch.fft.rfft(x.float(), *a, **k))(K, L2)
        Uf = (lambda x, *a, **k: torch.fft.rfft(x.float(), *a, **k))(u_t, L2)
        y = (lambda x, *a, **k: torch.fft.irfft(x, *a, **k).to(torch.bfloat16))(Uf * Kf[None, :, :], L2)[:, :, :L]
        y = (lambda x, *d: x.permute(*d))(y, 0, 2, 1)
        return y + u * D_skip[None, None, :]

    a = _A_ref(A_x, A_wq, A_wk, A_wv, A_wo)
    b = _B_ref(B_u, B_log_A_real, B_A_imag, B_C_real, B_C_imag, B_log_dt, B_D_skip)
    return torch.concatenate([a, b], axis=-1)
```

```python
import re
def _regs(tok):
    tok=tok.strip()
    tok=re.sub(r'^-|^\||\|$|^abs\(|\)$','',tok)
    m=re.fullmatch(r'([vsa])(\d+)',tok)
    if m: return [(m.group(1),int(m.group(2)))]
    m=re.fullmatch(r'([vsa])\[(\d+):(\d+)\]',tok)
    if m: return [(m.group(1),i) for i in range(int(m.group(2)),int(m.group(3))+1)]
    if tok=='vcc': return [('s',106),('s',107)]
    if tok=='vcc_lo': return [('s',106)]
    if tok=='vcc_hi': return [('s',107)]
    if tok=='exec': return [('s',126),('s',127)]
    if tok=='exec_lo': return [('s',126)]
    if tok=='exec_hi': return [('s',127)]
    if tok=='m0': return [('s',124)]
    return []
TRANS=('v_exp_f32','v_log_f32','v_rcp_f32','v_rsq_f32','v_sqrt_f32','v_sin_f32','v_cos_f32','v_exp_f16','v_rcp_iflag_f32')
def passes(op):
    if '32x32x4bf16' in op or '32x32x1' == op[11:18] and '16' not in op: return 16
    if '32x32x16' in op or '32x32x8' in op: return 8
    if '16x16x32' in op or '16x16x16' in op: return 4
    raise ValueError(op)
class I: pass
def parse(line):
    s=line.split(';')[0].split('//')[0].strip()
    if not s or s.endswith(':') or s.startswith('.'): return None
    m=re.match(r'(\S+)\s*(.*)',s); op=m.group(1); rest=m.group(2)
    op=re.sub(r'_e32$|_e64$','',op)
    ops=[];depth=0;cur=''
    for ch in rest:
        if ch=='[':depth+=1
        if ch==']':depth-=1
        if ch==',' and depth==0: ops.append(cur);cur=''
        else: cur+=ch
    ops.append(cur)
    mods=''
    if ops:
        last=ops[-1].strip().split(None,1)
        if last:
            ops[-1]=last[0]; mods=last[1] if len(last)>1 else ''
    ops=[o.strip() for o in ops if o.strip()]
    x=I(); x.op=op; x.txt=s; x.mods=mods; x.w=[]; x.r=[]; x.kind='other'; x.slots=1
    x.A=x.B=x.C=[]
    if op=='s_nop': x.kind='nop'; x.slots=int(ops[0],0)+1; return x
    if op.startswith('v_mfma'):
        x.kind='mfma'; x.w=_regs(ops[0]); x.A=_regs(ops[1]); x.B=_regs(ops[2]); x.C=_regs(ops[3]); x.r=x.A+x.B+x.C; x.p=passes(op); return x
    if op.startswith('v_'):
        x.kind='valu'
        if op.startswith('v_cmp'):
            x.w=_regs(ops[0]); x.r=sum((_regs(o) for o in ops[1:]),[])
            if op.startswith('v_cmpx'): x.w+= [('s',126),('s',127)]
        elif op in('v_readfirstlane_b32','v_readlane_b32'):
            x.w=_regs(ops[0]); x.r=sum((_regs(o) for o in ops[1:]),[])
        elif op.startswith('v_permlane') or op=='v_swap_b32':
            x.w=_regs(ops[0])+_regs(ops[1]); x.r=list(x.w)
        elif op in('v_add_co_u32','v_sub_co_u32','v_addc_co_u32'):
            x.w=_regs(ops[0])+_regs(ops[1]); x.r=sum((_regs(o) for o in ops[2:]),[])
        else:
            x.w=_regs(ops[0]); x.r=sum((_regs(o) for o in ops[1:]),[])
            if op.startswith('v_fmac') or 'UNUSED_PRESERVE' in mods or op=='v_writelane_b32' or 'dpp' in op: x.r+=x.w
        x.trans = op in TRANS
        x.dpp = ('row_' in mods or 'quad_perm' in mods or 'wave_' in mods)
        return x
    if op.startswith('ds_'):
        x.kind='ds'
        if op.startswith('ds_read') or op.startswith('ds_bperm') or op.startswith('ds_perm') or op.startswith('ds_swizzle'):
            x.w=_regs(ops[0]); x.r=sum((_regs(o) for o in ops[1:]),[])
        else: x.r=sum((_regs(o) for o in ops),[])
        return x
    if op.startswith('buffer_') or op.startswith('global_'):
        x.kind='vmem'; x.lds=(' lds' in ' '+mods) or '_lds_' in op
        allr=[_regs(o) for o in ops]
        isload=('load' in op) and not x.lds
        if isload: x.w=allr[0]; x.r=sum(allr[1:],[])
        else: x.r=sum(allr,[])
        if 'atomic' in op and 'sc0' in mods: x.w=allr[0]
        x.store = ('store' in op)
        x.wide = x.store and ('x3' in op or 'x4' in op)
        x.data=[]
        if x.store: x.data = allr[0] if op.startswith('buffer_') else allr[1]
        if x.lds: x.r+=[('s',124)]
        return x
    if op.startswith('s_'):
        x.kind='salu'
        if op.startswith('s_cmp') or op.startswith('s_cbranch') or op in('s_waitcnt','s_barrier','s_branch','s_endpgm','s_setprio','s_sleep','s_bitcmp1_b32','s_bitcmp0_b32','s_setpc_b64'):
            x.r=sum((_regs(o) for o in ops),[])
        else:
            x.w=_regs(ops[0]); x.r=sum((_regs(o) for o in ops[1:]),[])
            if 'saveexec' in op: x.w+=[('s',126),('s',127)]
        return x
    raise ValueError("unknown instr: "+s)
def isv(r): return r[0] in 'va'
def check(lines, name=''):
    ins=[(n,parse(l)) for n,l in enumerate(lines)]
    ins=[(n,x) for n,x in ins if x is not None]
    errs=[]
    for j,(nj,c) in enumerate(ins):
        dist=0
        for i in range(j-1,max(-1,j-40),-1):
            ni,p=ins[i]
            need=0; why=''
            pw=set(p.w); cr=set(c.r); cw=set(c.w)
            def upd(n,w):
                nonlocal need,why
                if n>need: need=n; why=w
            if p.kind=='valu':
                vw={r for r in pw if isv(r)}; sw={r for r in pw if r[0]=='s'}
                if c.kind=='mfma' and vw&cr: upd(2,'VALU->MFMA')
                if c.kind=='valu':
                    if c.op in('v_readfirstlane_b32','v_readlane_b32') and vw&cr: upd(1,'VALU->readlane')
                    if c.op.startswith('v_permlane') and vw&cr: upd(2,'VALU->permlane')
                    if c.dpp and vw&cr: upd(2,'VALU->DPP')
                    if p.trans and not c.trans and vw&cr: upd(1,'trans->VALU')
                    if sw&cr: upd(2,'VALU sgpr->VALU read')
                    if ('SDWA' in p.mods.upper() or 'dst_sel' in p.mods or 'op_sel' in p.mods and not p.op.startswith('v_pk')) and vw&(cr|cw): upd(1,'opsel')
                    if ('s',126) in sw and c.dpp: upd(5,'exec->dpp')
                if c.kind=='vmem' and sw&cr: upd(5,'VALU sgpr->VMEM')
                if c.kind=='mfma' and ('s',126) in sw: upd(4,'VALU exec->mfma')
                if c.kind=='salu' and sw&cr: upd(1,'VALU sgpr->SALU (paranoid)')
            if p.kind=='salu' and ('s',124) in pw and c.kind=='vmem' and c.lds: upd(1,'m0->DMA')
            if p.kind=='mfma':
                n={2:5,4:8,8:12,16:20}[p.p]
                if c.kind=='mfma':
                    if pw&set(c.A+c.B): upd(n,'MFMA D->A/B')
                    if pw&set(c.C):
                        if not (set(c.C)==pw and c.p==p.p): upd({2:4,4:6,8:10,16:18}[p.p],'MFMA D->C overlap')
                    if pw&cw and not (pw&set(c.C)): upd({2:4,4:6,8:10,16:18}[p.p],'MFMA D->D WAW (paranoid)')
                elif c.kind in('valu','ds','vmem'):
                    if pw&(cr|cw): upd(n,'MFMA D->VALU/mem')
                    if c.kind=='valu' and set(p.C)&cw: upd({2:1,4:3,8:7,16:15}[p.p],'MFMA C WAR')
            if p.kind=='vmem' and p.wide and c.kind=='valu' and set(p.data)&cw: upd(2,'store data WAR')
            if p.kind=='vmem' and p.wide and c.kind in('ds','vmem') and set(p.data)&cw: upd(1,'store data WAR')
            if need>dist:
                errs.append(f"{name}: line {nj} '{c.txt}' needs {need} after line {ni} '{p.txt}' ({why}), has {dist}")
            dist+=p.slots
            if dist>=21: break
    return errs
```

```python
import sys, math
import hz
NAME="concat_heads__grouped_kv_mqa__ssm_conv_s4d__prompt"
OPT=dict(stamp=0, force_fb=0)
for a in sys.argv[2:]:
    k,v=a.split('='); OPT[k]=int(v)

L=[]
def e(s):
    for x in s.split('\n'):
        x=x.strip()
        if x: L.append(('    ' if not x.endswith(':') else '')+x)
def V(a,n=1): return f"v{a}" if n==1 else f"v[{a}:{a+n-1}]"
def S(a,n=1): return f"s{a}" if n==1 else f"s[{a}:{a+n-1}]"
def nop(n):
    while n>0:
        k=min(n,16); e(f"s_nop {k-1}"); n-=k

WS_UT0=0; WS_UT1=0x2A0000; UTP=4224; WS_KV=0x540000; WS_ST=0x580000; WS_OF=0x582000; WS_O=0x600000; WS_SIZE=0x910000
TILE=3328
SLOT=[0,40960,81920]; WQO=16384
L_WK=81920; L_WV=107520; L_X8=133120; L_UT=143360; L_STG=153920
L_KG=122880; KGP=4608; L_QX=145408; QXP=3328
L_U=[0,18560,81920,100480]; UCP=4640
L_R=[37120,45568,119040,127488]; RCP=4224
L_X=[54016,135936]; L_Y=[0,80640]; L_Z=[26624,107264]
L_FLAG=162560
L_YS=[L_U[b]+64*(b>>1) for b in range(4)]
LDS_SIZE=163840
sX,sWQ,sWKV,sWO,sU,sWS,sOUT,sDBG=36,40,44,48,52,56,60,64
sWv,sQ,sB,sRB,sHG,sRot,sConv,sCI=68,69,70,71,72,73,74,75
sT=list(range(76,96))
sLoop=96; sSpin=97; sA=98; sBb=99
sEx=100
vLane,vL16=0,1
T=list(range(2,10))
Qa1,Qa2,Qb1,Qb2=10,14,16,20
vN,vOA0,vOA1,vOA2=22,23,24,25
vKV=[26,27,28]; vK2=[29,30,31]
vYst,vP10=32,33
vY=34
vLA,vAI,vCR,vCI,vLDT,vD=42,43,44,45,46,47

stamp_i=[0]
def stamp(name, waves=(0,4)):
    if not OPT['stamp']: return
    if name not in STAMPS: STAMPS.append(name)
    i=STAMPS.index(name)
    e(f"s_memrealtime s[92:93]\ns_waitcnt lgkmcnt(0)\nv_writelane_b32 v253, s92, {i}")
def stamp_dump():
    if not OPT['stamp']: return
    e(f"""s_lshl_b32 s94, s2, 3
    s_add_u32 s94, s94, {S(sWv)}
    s_lshl_b32 s94, s94, 8
    s_add_u32 s94, s94, {0x880000}
    s_mov_b64 exec, -1
    v_lshlrev_b32 v252, 2, v0
    buffer_store_dword v253, v252, {S(sWS,4)}, s94 offen""")
STAMPS=[]

def srd(s, p, nbytes):
    e(f"s_mov_b32 s{s}, s{p}\ns_mov_b32 s{s+1}, s{p+1}\ns_mov_b32 s{s+2}, {nbytes}\ns_mov_b32 s{s+3}, 0x20000")
def dma(vaddr, srd_, soff, m0expr=None, sc1=False):
    e(f"buffer_load_dwordx4 {V(vaddr)}, {S(srd_,4)}, {soff} offen {'sc1 ' if sc1 else ''}lds")
def selb(dst,vals):
    d=vals[1]-vals[0]
    return f"s_mul_i32 s{dst}, {S(sB)}, {d}\ns_add_u32 s{dst}, s{dst}, {vals[0]}"
def div10(dst,src,tmp=None):
    e(f"v_mul_u32_u24 {V(dst)}, 0x199a, {V(src)}\nv_lshrrev_b32 {V(dst)}, 16, {V(dst)}")

def entry():
    e("s_cmp_ge_u32 s2, 256\ns_cbranch_scc1 L_exit")
    e("s_load_dwordx16 s[4:19], s[0:1], 0\ns_load_dwordx8 s[20:27], s[0:1], 64\ns_load_dwordx4 s[28:31], s[0:1], 96\ns_load_dwordx2 s[32:33], s[0:1], 112")
    e("s_getpc_b64 s[34:35]\nL_pc:")
    e(f"v_lshrrev_b32 v2, 6, v0\nv_and_b32 v0, 63, v0\nv_readfirstlane_b32 {S(sWv)}, v2")
    e(f"s_lshr_b32 s76, s2, 3\ns_and_b32 s77, s2, 7")
    e(f"s_cmp_lg_u32 {S(sWv)}, 7\ns_cbranch_scc1 L_nopf")
    e(f"s_lshl_b32 s78, s76, 10\nv_and_b32 v2, 7, v0\nv_lshlrev_b32 v2, 7, v2\nv_add_u32 v2, s78, v2\nv_min_u32 v2, L_codeend-L_pc-4, v2\nglobal_load_dword v254, v2, s[34:35]")
    e("L_nopf:")
    e(f"""s_and_b32 {S(sQ)}, {S(sWv)}, 3
    s_lshr_b32 {S(sB)}, {S(sWv)}, 2
    s_and_b32 s78, s76, 3
    s_lshl_b32 s79, s77, 2
    s_add_u32 {S(sRB)}, s79, s78
    s_lshr_b32 {S(sHG)}, s76, 2
    s_lshl_b32 s78, s78, 1
    s_add_u32 s78, s78, {S(sHG)}
    s_mul_i32 s79, s78, 52
    s_lshr_b32 s79, s79, 8
    s_mul_i32 s79, s79, 5
    s_sub_u32 {S(sRot)}, s78, s79
    s_cmp_lt_u32 {S(sHG)}, 5
    s_cselect_b32 {S(sConv)}, 1, 0
    s_lshl_b32 s79, {S(sHG)}, 5
    s_add_u32 {S(sCI)}, s79, {S(sRB)}""")
    e(f"v_lshlrev_b32 {V(vL16)}, 4, v0")
    div10(2,0)
    e(f"""v_mul_u32_u24 v3, 10, v2
    v_sub_u32 v3, v0, v3
    v_lshlrev_b32 v3, 4, v3
    v_mul_u32_u24 v2, 1280, v2
    v_add_u32 {V(vP10)}, v2, v3""")
    e(f"""s_and_b32 s78, {S(sWv)}, 1
    s_lshl_b32 s79, s78, 2
    v_lshrrev_b32 v5, 4, v0
    v_add_u32 v6, s79, v5
    v_lshlrev_b32 v7, 1, v6
    v_and_b32 v8, 15, v0
    v_xor_b32 v7, v7, v8
    v_lshlrev_b32 v7, 4, v7
    v_mul_u32_u24 v6, 1280, v6
    v_add_u32 v4, v6, v7""")
    e(f"""s_lshl_b32 s80, {S(sRB)}, 6
    s_mul_i32 s81, {S(sWv)}, 6
    s_add_u32 s80, s80, s81
    s_sub_u32 s80, s80, 1
    s_mul_i32 s80, s80, 1280
    v_add_u32 v6, s80, {V(vP10)}""")
    e("s_waitcnt lgkmcnt(0)")
    e(f"s_and_b32 s82, {S(sB)}, {S(sConv)}\ns_cmp_eq_u32 s82, 0\ns_cbranch_scc1 L_noparam")
    e(f"""s_lshl_b32 s82, {S(sCI)}, 2
    s_add_u32 s82, s82, {S(sQ)}
    s_lshl_b32 s83, s82, 8
    v_lshlrev_b32 v2, 2, v0
    v_add_u32 v2, s83, v2
    s_lshl_b32 s82, s82, 1
    v_mov_b32 v3, s82
    global_load_dword {V(vLA)}, v2, s[16:17]
    global_load_dword {V(vAI)}, v2, s[18:19]
    global_load_dword {V(vCR)}, v2, s[20:21]
    global_load_dword {V(vCI)}, v2, s[22:23]
    global_load_ushort {V(vLDT)}, v3, s[24:25]
    global_load_ushort {V(vD)}, v3, s[26:27]
    L_noparam:""")
    e(f"""s_cmp_eq_u32 {S(sB)}, 0
    s_cselect_b32 s{sWKV}, s8, s10
    s_cselect_b32 s{sWKV+1}, s9, s11
    s_mov_b32 s{sWKV+2}, 25600
    s_mov_b32 s{sWKV+3}, 0x20000
    s_mul_i32 s82, {S(sB)}, 25600
    s_lshl_b32 s83, {S(sQ)}, 10
    s_add_u32 s82, s82, s83
    s_add_u32 s82, s82, {L_WK}""")
    for m in range(6):
        e(f"s_add_u32 m0, s82, {4096*m}\ns_add_u32 s84, s83, {4096*m}")
        dma(vL16,sWKV,"s84")
    e(f"s_cmp_lg_u32 {S(sQ)}, 0\ns_cbranch_scc1 L_nowk7\ns_add_u32 m0, s82, {4096*6}\ns_add_u32 s84, s83, {4096*6}")
    dma(vL16,sWKV,"s84"); e("L_nowk7:")
    srd(sX,4,2621440)
    e(f"""s_lshl_b32 s82, {S(sRB)}, 3
    s_add_u32 s82, s82, {S(sHG)}
    s_mul_i32 s82, s82, 10240
    s_lshr_b32 s83, {S(sWv)}, 1
    s_lshl_b32 s84, s83, 8
    s_add_u32 s84, s84, s82
    s_lshl_b32 s83, s83, 11
    s_lshl_b32 s85, s78, 10
    s_add_u32 s83, s83, s85
    s_add_u32 m0, s83, {L_X8}""")
    srd(sU,14,2621440)
    dma(4,sX,"s84")
    e(f"s_cmp_ge_u32 {S(sWv)}, 2\ns_cbranch_scc1 L_nox8b\ns_add_u32 m0, s85, {L_X8+4*2048}\ns_add_u32 s84, s82, 1024")
    dma(4,sX,"s84"); e("L_nox8b:")
    e(f"""s_mul_i32 s82, {S(sHG)}, 160
    s_mul_i32 s83, {S(sWv)}, 960
    s_add_u32 m0, s83, {L_UT}
    s_mov_b32 exec_hi, 0x0fffffff""")
    dma(6,sU,"s82")
    e(f"s_cmp_ge_u32 {S(sWv)}, 3\ns_cbranch_scc1 L_noub\ns_add_u32 m0, s83, {L_UT+8*960}\nv_add_u32 v6, {48*1280}, v6")
    dma(6,sU,"s82"); e("L_noub:\ns_mov_b32 exec_hi, -1")
    srd(sWQ,6,819200)
    srd(sWS,32,WS_SIZE)

vXA=116; vWA=124; vXd=125; vWd=126
sXo,sWo=86,87
def chunk_scalars(c_expr_reg):
    e(f"""s_lshl_b32 s{sXo}, s{c_expr_reg}, 8
    s_add_u32 s{sXo}, s{sXo}, s88
    s_mul_i32 s{sWo}, s{c_expr_reg}, 163840
    s_add_u32 s{sWo}, s{sWo}, s89""")
def chunk_next(reg):
    e(f"s_add_u32 s{reg}, s{reg}, 1\ns_cmp_eq_u32 s{reg}, 5\ns_cselect_b32 s{reg}, 0, s{reg}")
def chunk_dma_list(slotreg):
    out=[]
    for m in range(4):
        out.append((f"s_add_u32 m0, s{slotreg}, {4096*m}\ns_add_u32 s84, s{sXo}, {m*16*1280}", f"buffer_load_dwordx4 {V(vXd)}, {S(sX,4)}, s84 offen lds"))
    for g2 in range(2):
        for p in range(3):
            out.append((f"s_add_u32 m0, s{slotreg+1}, {3072*g2+1024*p}\ns_add_u32 s84, s{sWo}, {g2*16*1280}", f"buffer_load_dwordx4 {V(vWd+p)}, {S(sWQ,4)}, s84 offen lds"))
    return out
sSl=90
def slot_scalars(slot_const=None, slot_reg=None):
    if slot_const is not None:
        e(f"s_lshl_b32 s{sSl}, {S(sQ)}, 10\ns_mul_i32 s{sSl+1}, {S(sQ)}, 6144\ns_add_u32 s{sSl}, s{sSl}, {slot_const}\ns_add_u32 s{sSl+1}, s{sSl+1}, {slot_const+WQO}")
    else:
        e(f"s_lshl_b32 s{sSl}, {S(sQ)}, 10\ns_mul_i32 s{sSl+1}, {S(sQ)}, 6144\ns_add_u32 s{sSl}, s{sSl}, s{slot_reg}\ns_add_u32 s{sSl+1}, s{sSl+1}, s{slot_reg}\ns_add_u32 s{sSl+1}, s{sSl+1}, {WQO}")
sKC=sA

def common_addr():
    e(selb(76,L_X)); e(selb(77,L_Y)); e(selb(78,L_Z))
    e(f"""    v_add_u32 {V(vKV[0])}, s76, {V(vL16)}
    v_add_u32 {V(vKV[1])}, s77, {V(vL16)}
    v_add_u32 {V(vKV[2])}, s78, {V(vL16)}
    v_lshrrev_b32 v2, 5, v0
    v_mul_u32_u24 v3, {TILE}, v2
    v_and_b32 v4, 31, v0
    v_lshlrev_b32 v5, 3, v4
    v_add_u32 v3, v3, v5
    v_add_u32 v3, 3072, v3
    v_add_u32 {V(vK2[0])}, s76, v3
    v_add_u32 {V(vK2[1])}, s77, v3
    v_add_u32 {V(vK2[2])}, s78, v3""")
    e(f"""s_mul_i32 s76, {S(sHG)}, 20
    s_and_b32 s77, {S(sQ)}, 1
    s_mul_i32 s77, s77, 10
    s_add_u32 s76, s76, s77
    s_mul_i32 s77, {S(sB)}, 5
    s_add_u32 s76, s76, s77
    s_mul_i32 s77, {S(sRB)}, 81920
    s_lshr_b32 s78, {S(sQ)}, 1
    s_mul_i32 s78, s78, 40960
    s_add_u32 s77, s77, s78
    s_add_u32 s77, s77, {WS_O}
    v_lshrrev_b32 v5, 4, v4
    v_mul_u32_u24 v5, 20480, v5
    v_and_b32 v6, 15, v0
    v_lshlrev_b32 v6, 4, v6
    v_add_u32 v5, v5, v6
    v_add_u32 v5, s77, v5""")
    for k,(dst,add,useh) in enumerate(((vOA0,0,1),(vOA1,2,1),(vOA2,4,0))):
        e(f"s_add_u32 s78, s76, {add}")
        if useh: e("v_add_u32 v6, s78, v2")
        else: e("v_mov_b32 v6, s78")
        e(f"""v_lshrrev_b32 v7, 3, v6
        v_lshlrev_b32 v7, 10, v7
        v_bfe_u32 v8, v6, 2, 1
        v_lshlrev_b32 v8, 9, v8
        v_add_u32 v7, v7, v8
        v_and_b32 v8, 1, v6
        v_lshlrev_b32 v8, 8, v8
        v_add_u32 v7, v7, v8
        v_bfe_u32 v8, v6, 1, 1
        v_lshlrev_b32 v8, 3, v8
        v_add3_u32 {V(dst)}, v7, v8, v5""")
    e(f"v_cmp_gt_u32 vcc, 32, v0\nv_mov_b32 v7, 0x7fffffff\ns_nop 0\nv_cndmask_b32 {V(vOA2)}, v7, {V(vOA2)}, vcc")
    e(f"""s_lshl_b32 s76, {S(sWv)}, 8
    v_add_u32 v2, s76, v0
    v_mul_u32_u24 v2, 2560, v2
    s_lshl_b32 s77, {S(sCI)}, 3
    s_add_u32 s77, s77, 1280
    s_cmp_eq_u32 {S(sConv)}, 0
    s_cselect_b32 s77, 0x40000000, s77
    v_add_u32 {V(vYst)}, s77, v2""")

def q_wave_prologue():
    e(f"""s_lshl_b32 s76, {S(sQ)}, 2
    v_lshrrev_b32 v2, 4, v0
    v_add_u32 v2, s76, v2
    v_and_b32 v3, 15, v0
    v_xor_b32 v3, v3, v2
    v_lshlrev_b32 v3, 4, v3
    v_mul_u32_u24 v2, 1280, v2
    v_add_u32 {V(vXd)}, v2, v3""")
    for p in range(3):
        e(f"""v_add_u32 v2, {64*p}, v0
        v_mul_u32_u24 v3, 0x1556, v2
        v_lshrrev_b32 v3, 16, v3
        v_mul_u32_u24 v4, 12, v3
        v_sub_u32 v4, v2, v4
        v_lshlrev_b32 v4, 4, v4
        v_mul_u32_u24 v3, 1280, v3
        v_add_u32 {V(vWd+p)}, v3, v4""")
    e(f"""s_mul_i32 s88, {S(sRB)}, 81920
    s_mul_i32 s89, {S(sHG)}, 160
    s_and_b32 s89, s89, 0xffffffc0
    s_mul_i32 s76, {S(sQ)}, 40960
    s_add_u32 s89, s89, s76
    s_mov_b32 s{sKC}, {S(sRot)}""")
    chunk_scalars(sKC); chunk_next(sKC); slot_scalars(SLOT[0])
    for pre,d in chunk_dma_list(sSl): e(pre); e(d)
    e(f"""s_lshr_b32 s76, {S(sQ)}, 1
    s_lshl_b32 s76, s76, 5
    v_and_b32 v2, 31, v0
    v_add_u32 v2, s76, v2
    v_lshrrev_b32 v3, 5, v0
    v_and_b32 v4, 15, v2
    v_xor_b32 v4, v4, v3
    v_lshlrev_b32 v4, 4, v4
    v_lshlrev_b32 v2, 8, v2
    v_add_u32 {V(vXA)}, v2, v4""")
    for st in range(1,8): e(f"v_xor_b32 {V(vXA+st)}, {32*st}, {V(vXA)}")
    e(f"""s_and_b32 s76, {S(sHG)}, 1
    s_lshl_b32 s76, s76, 5
    s_and_b32 s77, {S(sQ)}, 1
    s_mul_i32 s77, s77, 80
    s_add_u32 s76, s76, s77
    s_add_u32 s76, s76, {WQO}
    v_lshlrev_b32 v3, 3, v3
    v_bfe_u32 v4, v0, 2, 2
    v_add_u32 v3, v3, v4
    v_mul_u32_u24 v3, 192, v3
    v_bfe_u32 v4, v0, 4, 1
    v_lshlrev_b32 v4, 5, v4
    v_add_u32 v3, v3, v4
    v_and_b32 v4, 3, v0
    v_lshlrev_b32 v4, 3, v4
    v_add3_u32 {V(vWA)}, v3, v4, s76""")
    e(f"""v_lshrrev_b32 v2, 4, v0
    v_and_b32 v3, 3, v0
    v_bfe_u32 v4, v0, 2, 2
    v_lshlrev_b32 v5, 4, v2
    v_lshlrev_b32 v6, 2, v3
    v_add3_u32 v5, v5, v6, v4
    v_mul_u32_u24 v5, 160, v5
    s_mul_i32 s76, {S(sQ)}, 40
    s_add_u32 s76, s76, {L_UT}
    v_add_u32 v170, s76, v5
    s_lshl_b32 s76, {S(sQ)}, 11
    s_add_u32 s76, s76, {L_STG}
    v_xor_b32 v5, v2, v3
    v_lshlrev_b32 v5, 5, v5
    v_lshlrev_b32 v6, 7, v3
    v_lshlrev_b32 v7, 3, v4
    v_add3_u32 v5, v5, v6, v7
    v_add_u32 v171, s76, v5
    v_bfe_u32 v2, v0, 3, 2
    v_bfe_u32 v3, v0, 1, 2
    v_xor_b32 v3, v3, v2
    v_lshlrev_b32 v3, 5, v3
    v_and_b32 v4, 1, v0
    v_lshlrev_b32 v4, 4, v4
    v_lshlrev_b32 v5, 7, v2
    v_add3_u32 v3, v3, v4, v5
    v_lshrrev_b32 v4, 5, v0
    v_lshlrev_b32 v5, 9, v4
    v_add3_u32 v172, v3, v5, s76
    v_mul_u32_u24 v4, {WS_UT1}, v4
    v_mul_u32_u24 v2, {UTP}, v2
    v_and_b32 v3, 7, v0
    v_lshlrev_b32 v3, 4, v3
    v_add3_u32 v173, v4, v2, v3""")
    e(f"s_cmp_lg_u32 {S(sQ)}, 0\ns_cbranch_scc1 L_noflaginit\nv_mov_b32 v2, {L_FLAG}\nv_mov_b32 v3, 0\nds_write_b32 v2, v3\nL_noflaginit:")

def u_transpose():
    for k in range(5):
        for cp in range(2):
            e(f"ds_read_b64_tr_b16 {V(130+4*k+2*cp,2)}, v170 offset:{(1-cp)*160+8*k}")
    e(f"""s_mul_i32 s76, {S(sHG)}, 80
    s_mul_i32 s77, {S(sQ)}, 20
    s_add_u32 s76, s76, s77
    s_mul_i32 s76, s76, {UTP}
    s_lshl_b32 s77, {S(sRB)}, 7
    s_add_u32 s77, s77, s76
    s_add_u32 s77, s77, {WS_UT0+128}""")
    e("s_waitcnt lgkmcnt(0)")
    for k in range(5):
        b=(k&1)*1024
        e(f"ds_write_b64 v171, {V(130+4*k,2)} offset:{b}\nds_write_b64 v171, {V(132+4*k,2)} offset:{b+512}\nds_read_b128 {V(150+4*k,4)}, v172 offset:{b}")
    e(f"s_cmp_lg_u32 {S(sRB)}, 0\ns_cbranch_scc1 L_nozp")
    e(f"""v_cmp_le_u32 vcc, 20, v0
    v_subrev_u32 v3, 20, v0
    v_mov_b32 v4, {WS_UT1}
    v_cndmask_b32 v3, v0, v3, vcc
    v_cndmask_b32 v4, 0, v4, vcc
    v_mul_u32_u24 v3, {UTP}, v3
    v_add3_u32 v3, v3, v4, s76
    v_mov_b32 v4, 0
    v_mov_b32 v5, 0
    v_mov_b32 v6, 0
    v_mov_b32 v7, 0
    s_mov_b32 exec_lo, -1
    s_mov_b32 exec_hi, 0xff
    buffer_store_dwordx4 v[4:7], v3, {S(sWS,4)}, 0 offen offset:112 sc1
    s_mov_b32 exec_hi, -1
    L_nozp:""")
    for k in range(5):
        e(f"s_waitcnt lgkmcnt({4-k})\ns_add_u32 s78, s77, {4*k*UTP}\nbuffer_store_dwordx4 {V(150+4*k,4)}, v173, {S(sWS,4)}, s78 offen sc1")

def kv_addr():
    e(f"""s_lshr_b32 s76, {S(sQ)}, 1
    s_mul_i32 s76, s76, 25600
    s_and_b32 s77, {S(sQ)}, 1
    s_lshl_b32 s77, s77, 5
    s_add_u32 s76, s76, s77
    s_add_u32 s76, s76, {L_WK}
    v_lshrrev_b32 v2, 4, v0
    v_lshlrev_b32 v3, 3, v2
    v_bfe_u32 v4, v0, 2, 2
    v_add_u32 v3, v3, v4
    v_mul_u32_u24 v3, 40, v3
    v_and_b32 v4, 3, v0
    v_lshlrev_b32 v4, 3, v4
    v_add3_u32 v88, v3, v4, s76
    v_and_b32 v3, 7, v0
    v_lshlrev_b32 v4, 1, v3
    v_xor_b32 v4, v4, v2
    v_lshlrev_b32 v4, 4, v4
    v_lshlrev_b32 v3, 8, v3
    v_add_u32 v3, v3, v4
    v_add_u32 v89, {L_X8}, v3
    v_xor_b32 v90, 64, v89
    v_xor_b32 v91, 0x80, v89
    v_xor_b32 v92, 0xc0, v89""")
    e(f"""s_lshl_b32 s76, {S(sRB)}, 1
    s_lshr_b32 s77, {S(sHG)}, 2
    s_add_u32 s76, s76, s77
    s_mul_i32 s76, s76, {TILE}
    s_add_u32 s76, s76, {WS_KV}
    s_and_b32 s77, {S(sHG)}, 3
    v_and_b32 v3, 15, v0
    s_cmp_ge_u32 {S(sQ)}, 2
    s_cbranch_scc1 L_kva_v
    s_lshl_b32 s78, s77, 3
    v_add_u32 v3, s78, v3
    s_cmp_eq_u32 {S(sQ)}, 1
    s_cbranch_scc1 L_kva_k1
    v_and_b32 v4, 1, v2
    v_lshlrev_b32 v4, 5, v4
    v_add_u32 v3, v3, v4
    v_lshlrev_b32 v3, 4, v3
    v_lshrrev_b32 v4, 1, v2
    v_lshlrev_b32 v4, 3, v4
    v_add3_u32 v93, v3, v4, s76
    s_mov_b32 s80, 0x00ff00ff
    s_mov_b32 s81, 0x00ff00ff
    s_mov_b64 s[82:83], s[80:81]
    s_branch L_kva_done
    L_kva_k1:
    v_lshlrev_b32 v3, 3, v3
    s_add_u32 s76, s76, 3072
    v_add_u32 v93, s76, v3
    s_mov_b32 s80, 0xff
    s_mov_b32 s81, 0
    s_mov_b64 s[82:83], s[80:81]
    s_branch L_kva_done
    L_kva_v:
    s_and_b32 s78, {S(sQ)}, 1
    s_lshl_b32 s79, s78, 4
    v_add_u32 v3, s79, v3
    v_lshlrev_b32 v4, 5, v2
    v_add_u32 v3, v3, v4
    v_lshlrev_b32 v3, 4, v3
    s_lshr_b32 s79, s77, 1
    s_lshl_b32 s79, s79, 10
    s_add_u32 s76, s76, s79
    s_and_b32 s79, s77, 1
    s_lshl_b32 s79, s79, 3
    s_add_u32 s76, s76, s79
    s_add_u32 s76, s76, 1024
    v_add_u32 v93, s76, v3
    s_mov_b32 s80, -1
    s_mov_b32 s81, 0
    s_cmp_eq_u32 s78, 0
    s_cselect_b32 s82, -1, 0x000f000f
    s_mov_b32 s83, 0
    L_kva_done:""")
def kv_proj():
    def reads(setb, u0):
        for u in (u0,u0+1):
            b=setb+8*(u-u0)
            e(f"ds_read_b64_tr_b16 {V(b,2)}, v88 offset:{u*1280}\nds_read_b64_tr_b16 {V(b+2,2)}, v88 offset:{u*1280+160}\nds_read_b128 {V(b+4,4)}, {V(89+u)}")
    def mf(setb):
        for k in range(2):
            b=setb+8*k
            e(f"v_mfma_f32_16x16x32_bf16 v[48:51], {V(b,4)}, {V(b+4,4)}, v[48:51]\nv_mfma_f32_16x16x32_bf16 v[52:55], {V(b+4,4)}, {V(b,4)}, v[52:55]")
    for i in range(48,56): e(f"v_mov_b32 v{i}, 0")
    reads(56,0)
    e(f"s_mov_b32 s{sLoop}, 5\nL_kv:")
    body0=len(L)
    reads(72,2)
    e("v_add_u32 v88, 5120, v88")
    for u in range(4): e(f"v_add_u32 v{89+u}, 2048, v{89+u}")
    e("s_waitcnt lgkmcnt(6)"); mf(56)
    reads(56,0)
    e("s_waitcnt lgkmcnt(6)"); mf(72)
    e(f"s_sub_u32 s{sLoop}, s{sLoop}, 1\ns_cmp_lg_u32 s{sLoop}, 0\ns_cbranch_scc1 L_kv")
    LOOPS.append((body0,len(L)))
    e("s_waitcnt lgkmcnt(0)")
    e(f"s_cmp_lt_u32 {S(sQ)}, 2\ns_cbranch_scc1 L_kv_isk")
    nop(8)
    for i in range(4): e(f"v_mov_b32 v{48+i}, v{52+i}")
    e("L_kv_isk:"); nop(8)
    e("""v_cvt_pk_bf16_f32 v56, v48, v49
    v_cvt_pk_bf16_f32 v57, v50, v51
    v_mul_f32 v58, v48, v48
    v_fmac_f32 v58, v49, v49
    v_fmac_f32 v58, v50, v50
    v_fmac_f32 v58, v51, v51
    v_cndmask_b32 v58, 0, v58, s[82:83]""")
    e(f"""s_cmp_lg_u32 {S(sQ)}, 3
    s_cbranch_scc1 L_kv_nopad
    v_and_b32 v2, 15, v0
    v_cmp_eq_u32 vcc, 4, v2
    v_mov_b32 v3, 0x3f803f80
    s_nop 0
    v_cndmask_b32 v3, 0, v3, vcc
    v_cndmask_b32 v56, v3, v56, s[82:83]
    v_cndmask_b32 v57, v3, v57, s[82:83]
    L_kv_nopad:
    s_mov_b64 exec, s[80:81]
    buffer_store_dwordx2 v[56:57], v93, {S(sWS,4)}, 0 offen sc1
    s_mov_b64 exec, -1""")
    e("""v_mov_b32 v59, v58
    s_nop 1
    v_permlane32_swap_b32 v58, v59
    s_nop 1
    v_add_f32 v58, v58, v59
    v_mov_b32 v59, v58
    s_nop 1
    v_permlane16_swap_b32 v58, v59
    s_nop 1
    v_add_f32 v58, v58, v59""")
    for sh in (1,2,4,8):
        e(f"s_nop 1\nv_max_u32_dpp v58, v58, v58 row_ror:{sh} row_mask:0xf bank_mask:0xf")
    e(f"""s_lshl_b32 s76, s2, 4
    s_lshl_b32 s77, {S(sQ)}, 2
    s_add_u32 s76, s76, s77
    s_add_u32 s76, s76, {WS_ST}
    v_mov_b32 v2, 0
    s_mov_b64 exec, 1
    buffer_store_dword v58, v2, {S(sWS,4)}, s76 offen sc1
    s_cmp_lg_u32 {S(sQ)}, 1
    s_cbranch_scc1 L_noofr
    s_lshl_b32 s76, {S(sRB)}, 6
    s_lshl_b32 s77, {S(sHG)}, 2
    s_add_u32 s76, s76, s77
    s_add_u32 s76, s76, {WS_OF}
    buffer_store_dword v2, v2, {S(sWS,4)}, s76 offen sc1
    L_noofr:
    s_mov_b64 exec, -1""")
LOOPS=[]

def q_proj():
    accA,accB=48,64
    F=[80,92,104]
    def reads(st):
        b=F[st%3]
        return [f"ds_read_b128 {V(b,4)}, {V(vXA+st)}",
                f"ds_read_b64_tr_b16 {V(b+4,2)}, {V(vWA)} offset:{st*3072}",
                f"ds_read_b64_tr_b16 {V(b+6,2)}, {V(vWA)} offset:{st*3072+768}",
                f"ds_read_b64_tr_b16 {V(b+8,2)}, {V(vWA)} offset:{st*3072+40}",
                f"ds_read_b64_tr_b16 {V(b+10,2)}, {V(vWA)} offset:{st*3072+808}"]
    for i in range(32): e(f"v_mov_b32 v{accA+i}, 0")
    e(f"s_mov_b32 s{sLoop}, 0\ns_mov_b32 s{sBb}, {SLOT[2]}\ns_mov_b32 s79, 0")
    e("L_qp:")
    body0=len(L)
    e(f"s_cmp_ge_u32 s{sLoop}, 3\ns_cbranch_scc1 L_qp_nodma")
    chunk_scalars(sKC); chunk_next(sKC); slot_scalars(slot_reg=sBb)
    dl=chunk_dma_list(sSl)
    def compute(withdma):
        for x in reads(0)+reads(1): e(x)
        di=0
        for st in range(8):
            if st+2<8:
                for x in reads(st+2): e(x)
            n_after = 5*min(2,7-st)
            if withdma:
                e(dl[di][0])
            e(f"s_waitcnt lgkmcnt({n_after})")
            b=F[st%3]
            e(f"v_mfma_f32_32x32x16_bf16 {V(accA,16)}, {V(b+4,4)}, {V(b,4)}, {V(accA,16)}")
            if withdma:
                e(dl[di][1]); di+=1
                if st in (2,5): e(dl[di][0])
            e(f"v_mfma_f32_32x32x16_bf16 {V(accB,16)}, {V(b+8,4)}, {V(b,4)}, {V(accB,16)}")
            if withdma and st in (2,5): e(dl[di][1]); di+=1
        assert (not withdma) or di==10
    compute(True)
    e("s_waitcnt vmcnt(10)\ns_branch L_qp_join\nL_qp_nodma:")
    compute(False)
    e("s_waitcnt vmcnt(0)\nL_qp_join:")
    e(f"""s_add_u32 s{sLoop}, s{sLoop}, 1
    s_cmp_eq_u32 s{sLoop}, 5
    s_cbranch_scc1 L_qp_end
    s_mov_b32 s{sBb}, s79
    s_add_u32 s78, s79, 40960
    s_cmp_eq_u32 s78, 122880
    s_cselect_b32 s78, 0, s78
    s_sub_u32 s77, s78, s79
    s_mov_b32 s79, s78""")
    for k in range(9): e(f"v_add_u32 {V(vXA+k)}, s77, {V(vXA+k)}")
    e("s_barrier\ns_branch L_qp")
    LOOPS.append((body0,len(L)))
    e("L_qp_end:")
    c=20**-0.5*math.log2(math.e)
    import struct
    cb=struct.unpack('<I',struct.pack('<f',c))[0]
    e(f"s_mov_b32 s76, {cb:#x}"); nop(12)
    for acc in (accA,accB):
        for i in range(12): e(f"v_mul_f32 v{acc+i}, s76, v{acc+i}")
    for acc,q1,q2,n in ((accA,Qa1,Qa2,2),(accB,Qb1,Qb2,3)):
        for i in range(4): e(f"v_cvt_pk_bf16_f32 v{q1+i}, v{acc+2*i}, v{acc+2*i+1}")
        for i in range(2): e(f"v_cvt_pk_bf16_f32 v{q2+i}, v{acc+8+2*i}, v{acc+9+2*i}")
        e(f"v_mul_f32 v{n}, v{acc}, v{acc}")
        for i in range(1,8): e(f"v_fmac_f32 v{n}, v{acc+i}, v{acc+i}")
        e(f"v_mul_f32 v{n+2}, v{acc+8}, v{acc+8}")
        for i in range(9,12): e(f"v_fmac_f32 v{n+2}, v{acc+i}, v{acc+i}")
    e(f"""v_cmp_gt_u32 vcc, 32, v0
    s_nop 1
    v_cndmask_b32 v4, 0, v4, vcc
    v_cndmask_b32 v5, 0, v5, vcc
    v_add_f32 v2, v2, v4
    v_add_f32 v3, v3, v5
    v_max_u32 {V(vN)}, v2, v3""")
    for q2 in (Qa2,Qb2):
        e(f"v_mov_b32 v6, v{q2}\nv_mov_b32 v7, v{q2+1}\ns_nop 1\nv_permlane32_swap_b32 v{q2}, v6\nv_permlane32_swap_b32 v{q2+1}, v7")
    e(f"""s_mul_i32 s76, {S(sQ)}, {QXP}
    s_add_u32 s76, s76, {L_QX}
    v_add_u32 v2, s76, {V(vL16)}
    ds_write_b128 v2, v[10:13]
    ds_write_b128 v2, v[14:17] offset:1024
    ds_write_b128 v2, v[18:21] offset:2048
    s_waitcnt lgkmcnt(0)""")

z1,z16,z256,z512,z768,z1024,cur,cu2,tmp=92,94,96,98,100,102,104,106,108
ZE=110; CV=124; vKGw,vKGr,a2,b2,vDT,Cp=128,129,130,131,132,134
def cmul(d,a,b):
    assert d!=a and d!=b
    e(f"v_pk_mul_f32 {V(d,2)}, {V(a,2)}, {V(b,2)} op_sel:[0,0] op_sel_hi:[1,0]")
    e(f"v_pk_fma_f32 {V(d,2)}, {V(a,2)}, {V(b,2)}, {V(d,2)} op_sel:[1,1,0] op_sel_hi:[0,1,1] neg_lo:[0,1,0]")
LOG2E=0x3fb8aa3b; INV2PI=0x3e22f983
def rne_bf16(dst,src):
    e(f"v_cvt_pk_bf16_f32 {V(dst)}, {V(src)}, {V(src)}\nv_and_b32 {V(dst)}, 0xffff0000, {V(dst)}")
def kgen_dt():
    e(f"""v_lshlrev_b32 v2, 16, {V(vLDT)}
    v_mul_f32 v2, {LOG2E:#x}, v2
    v_exp_f32 v2, v2
    s_nop 0""")
    rne_bf16(vDT,2)
    e(f"""s_mul_i32 s76, {S(sQ)}, {KGP}
    s_add_u32 s76, s76, {L_KG}
    v_lshlrev_b32 v2, 2, v0
    v_add_u32 {V(vKGw)}, s76, v2
    v_and_b32 v2, 15, v0
    v_mul_u32_u24 v2, 288, v2
    v_lshrrev_b32 v3, 4, v0
    v_lshlrev_b32 v3, 4, v3
    v_add3_u32 {V(vKGr)}, v2, v3, s76""")
    for i in range(48,60): e(f"v_mov_b32 v{i}, 0")
def kgen_setup():
    e(f"""v_and_b32 v2, 0xffff0000, {V(vLA)}
    v_and_b32 v3, 0xffff0000, {V(vAI)}
    v_and_b32 v4, 0xffff0000, {V(vCR)}
    v_and_b32 v5, 0xffff0000, {V(vCI)}
    v_mul_f32 v2, {LOG2E:#x}, v2
    v_exp_f32 v2, v2
    v_mul_f32 v3, v3, {V(vDT)}
    v_add_f32 v6, {V(vDT)}, {V(vDT)}""")
    rne_bf16(2,2)
    e(f"""v_mul_f32 {V(b2)}, {INV2PI:#x}, v3
    v_mul_f32 v2, v2, {V(vDT)}
    v_mul_f32 {V(Cp)}, v4, v6
    v_mul_f32 {V(a2)}, {LOG2E^0x80000000:#x}, v2
    v_mul_f32 {V(Cp+1)}, v5, v6""")
    for r in (vLA,vAI,vCR,vCI): e(f"v_lshlrev_b32 {V(r)}, 16, {V(r)}")
    for z,p in ((z1,1.0),(z16,16.0),(z256,256.0)):
        import struct
        pb=struct.unpack('<I',struct.pack('<f',p))[0]
        e(f"""v_mul_f32 v2, {pb:#x}, {V(a2)}
        v_mul_f32 v3, {pb:#x}, {V(b2)}
        v_exp_f32 v2, v2
        v_fract_f32 v3, v3
        v_cos_f32 v4, v3
        v_sin_f32 v5, v3
        s_nop 0
        v_mul_f32 {V(z)}, v2, v4
        v_mul_f32 {V(z+1)}, v2, v5""")
cvi=[0]
def put(row,z,neg=False):
    t=CV+(cvi[0]&3); cvi[0]+=1
    e(f"v_cvt_pk_bf16_f32 {V(t)}, {V(z)}, {'-' if neg else ''}{V(z+1)}\nds_write_b32 {V(vKGw)}, {V(t)} offset:{row*288}")
def put_const(row,val):
    t=CV+(cvi[0]&3); cvi[0]+=1
    e(f"v_mov_b32 {V(t)}, {val}\nds_write_b32 {V(vKGw)}, {V(t)} offset:{row*288}")
def tile_reads(dst):
    for s in range(4): e(f"ds_read_b128 {V(dst+4*s,4)}, {V(vKGr)} offset:{64*s}")
def tile_mf(D):
    for s in range(4):
        e(f"s_waitcnt lgkmcnt({3-s})\nv_mfma_f32_16x16x32_bf16 {V(D,4)}, {V(76+4*s,4)}, {V(60+4*s,4)}, {V(D,4)}")
def kgen_loop():
    e(f"s_mov_b32 s{sLoop}, 2\nL_kg:")
    body0=len(L)
    put(0,Cp,True); p=Cp
    for j in range(1,16):
        n=cur if (j&1) else cu2
        cmul(n,p,z16); put(j,n,True); p=n
    tile_reads(60)
    put_const(0,"0x3f80"); put(1,z1); p=z1
    for ee in range(2,16):
        n = ZE+(ee-2) if ee%2==0 else cur
        cmul(n,p,z1); put(ee,n); p=n
    tile_reads(76)
    cmul(z512,z256,z256)
    cmul(z768,z512,z256)
    cmul(z1024,z512,z512)
    tile_mf(48)
    e("s_barrier")
    Z=lambda k: ZE+(k-2)
    put(0,z256)
    for k in range(1,8):
        n=cur if (k&1) else cu2
        cmul(n,z256,Z(2*k)); put(k,n)
    for base,z in ((8,z512),(12,z768)):
        put(base,z)
        for k in range(1,4):
            n=cur if (k&1) else cu2
            cmul(n,z,Z(4*k)); put(base+k,n)
    tile_reads(76)
    cmul(cur,z1024,Z(8))
    cmul(Cp,z1024,z512)
    cmul(cu2,z1024,z256)
    cmul(z1,z1024,z768)
    tile_mf(52)
    put(0,z1024); put(1,cur); put(2,cu2)
    cmul(tmp,cu2,Z(8)); put(3,tmp)
    cmul(cur,Cp,Z(8)); put(4,Cp); put(5,cur)
    cmul(cu2,z1,Z(8)); put(6,z1); put(7,cu2)
    cmul(tmp,z1,z16); put(8,tmp)
    tile_reads(76)
    kgen_setup()
    tile_mf(56)
    e(f"s_barrier\ns_sub_u32 s{sLoop}, s{sLoop}, 1\ns_cmp_lg_u32 s{sLoop}, 0\ns_cbranch_scc1 L_kg")
    LOOPS.append((body0,len(L)))
def kgen_finish():
    e(f"""s_mul_i32 s76, {S(sQ)}, {KGP}
    s_add_u32 s76, s76, {L_KG}
    v_and_b32 v2, 15, v0
    v_lshrrev_b32 v3, 4, v0
    v_cmp_gt_u32 vcc, 32, v0
    v_lshlrev_b32 v4, 4, v2
    v_lshlrev_b32 v5, 3, v3
    v_add_u32 v4, v4, v5
    v_lshlrev_b32 v5, 7, v3
    v_lshlrev_b32 v6, 3, v2
    v_add_u32 v5, v5, v6
    v_cndmask_b32 v4, v5, v4, vcc
    v_add_u32 v4, s76, v4
    v_lshlrev_b32 v5, 7, v3
    v_lshlrev_b32 v6, 2, v2
    v_add3_u32 v5, v5, v6, s76
    v_lshlrev_b32 v6, 16, {V(vD)}
    v_cmp_eq_u32 s[78:79], 0, v0
    v_lshlrev_b32 v8, 2, v0
    v_add_u32 v8, s76, v8
    v_cndmask_b32 v6, 0, v6, s[78:79]
    v_add_f32 v48, v48, v6
    v_cvt_pk_bf16_f32 v150, v51, v50
    v_cvt_pk_bf16_f32 v151, v49, v48
    v_cvt_pk_bf16_f32 v60, v52, v53
    v_cvt_pk_bf16_f32 v61, v54, v55
    v_cvt_pk_bf16_f32 v62, v56, v57
    v_cvt_pk_bf16_f32 v63, v58, v59
    ds_write_b64 v4, v[60:61]
    s_mov_b64 exec, vcc
    ds_write2_b32 v5, v62, v63 offset0:128 offset1:144
    s_mov_b32 exec_lo, 0
    s_mov_b32 exec_hi, 0x8000
    v_mov_b32 v7, s76
    ds_write_b32 v7, v62 offset:768
    s_mov_b64 exec, -1
    ds_read2_b32 v[144:145], v8 offset0:0 offset1:1
    ds_read2_b32 v[146:147], v8 offset0:64 offset1:65
    ds_read2_b32 v[148:149], v8 offset0:128 offset1:129""")
def lds_const_by_q(dst,vals):
    e(f"""s_mov_b32 s{dst}, {vals[0]}
    s_cmp_eq_u32 {S(sQ)}, 1
    s_cselect_b32 s{dst}, {vals[1]}, s{dst}
    s_cmp_eq_u32 {S(sQ)}, 2
    s_cselect_b32 s{dst}, {vals[2]}, s{dst}
    s_cmp_eq_u32 {S(sQ)}, 3
    s_cselect_b32 s{dst}, {vals[3]}, s{dst}""")
def poll_sync1():
    e(f"""v_lshlrev_b32 v2, 2, v0
    s_mov_b32 s{sSpin}, 0
    L_poll1:
    buffer_load_dword v3, v2, {S(sDBG,4)}, 0 offen sc1
    s_add_u32 s{sSpin}, s{sSpin}, 1
    s_cmp_gt_u32 s{sSpin}, 0x40000
    s_cbranch_scc1 L_poll1_done
    s_waitcnt vmcnt(0)
    v_cmp_ne_u32 vcc, 4, v3
    s_cbranch_vccnz L_poll1
    L_poll1_done:""")
def u_dma():
    lds_const_by_q(76,L_U)
    e(f"""s_lshl_b32 s77, {S(sCI)}, 2
    s_add_u32 s77, s77, {S(sQ)}
    s_mul_i32 s77, s77, {UTP}
    s_add_u32 s77, s77, 128""")
    for rho in range(4):
        src=(WS_UT1 if rho in (0,2) else WS_UT0)-(4 if rho<2 else 0)
        for i in range(4):
            e(f"s_add_u32 m0, s76, {rho*UCP+384+1024*i}\ns_add_u32 s78, s77, {src+1024*i}")
            dma(vL16,sWS,"s78",sc1=True)
    e(f"""v_mov_b32 v4, 0
    v_mov_b32 v5, 0
    v_mov_b32 v6, 0
    v_mov_b32 v7, 0
    v_add_u32 v2, s76, {V(vL16)}
    s_mov_b32 exec_hi, 0
    s_mov_b32 exec_lo, 0xffffff""")
    for rho in range(4): e(f"ds_write_b128 v2, v[4:7] offset:{rho*UCP}")
    e("s_mov_b64 exec, -1")
def expand_R():
    lds_const_by_q(76,L_R)
    e(f"""s_mov_b32 s77, 0x01000100
    s_mov_b32 s78, 0x03020302
    s_mov_b32 s79, 0x03020504
    s_mov_b32 s80, 0x05040504
    s_mov_b32 s81, 0x01000302
    v_and_b32 v2, 15, v0
    v_lshlrev_b32 v2, 5, v2
    v_lshrrev_b32 v3, 4, v0
    v_lshlrev_b32 v3, 3, v3
    v_add_u32 v2, v2, v3
    s_add_u32 s82, s76, 4088
    v_sub_u32 v2, s82, v2
    v_lshlrev_b32 v3, 3, v0
    s_add_u32 s82, s76, 4088-512
    v_sub_u32 v3, s82, v3
    s_add_u32 s82, s76, 3056
    v_sub_u32 v4, s82, {V(vL16)}
    v_lshlrev_b32 v5, 5, v0
    s_add_u32 s82, s76, 2016
    v_sub_u32 v5, s82, v5
    v_perm_b32 v152, v145, v144, s79
    v_perm_b32 v153, v144, v144, s77
    v_perm_b32 v156, v147, v147, s77
    v_perm_b32 v157, v146, v146, s78
    v_perm_b32 v158, v146, v146, s81
    v_perm_b32 v159, v146, v146, s77
    v_perm_b32 v160, v149, v149, s77
    v_perm_b32 v161, v149, v149, s77
    v_perm_b32 v162, v148, v148, s78
    v_perm_b32 v163, v148, v148, s78
    v_perm_b32 v164, v148, v148, s78
    v_perm_b32 v165, v148, v148, s81
    v_perm_b32 v166, v148, v148, s77
    v_perm_b32 v167, v148, v148, s77
    ds_write_b64 v2, v[150:151]
    ds_write_b64 v2, v[150:151] offset:{RCP-8}
    ds_write_b64 v3, v[152:153]
    ds_write_b64 v3, v[152:153] offset:{RCP-8}
    ds_write_b128 v4, v[156:159]
    ds_write_b64 v4, v[156:157] offset:{RCP-8}
    ds_write_b64 v4, v[158:159] offset:{RCP}
    ds_write_b128 v5, v[160:163]
    ds_write_b128 v5, v[164:167] offset:16
    ds_write_b64 v5, v[160:161] offset:{RCP-8}
    ds_write_b64 v5, v[162:163] offset:{RCP}
    ds_write_b64 v5, v[164:165] offset:{RCP+8}
    ds_write_b64 v5, v[166:167] offset:{RCP+16}
    v_mov_b32 v6, 0
    v_mov_b32 v7, 0
    v_lshlrev_b32 v2, 3, v0
    v_add_u32 v2, s76, v2
    s_mov_b32 exec_hi, 0
    s_mov_b32 exec_lo, 0x7fff
    ds_write_b64 v2, v[6:7] offset:4096
    s_mov_b32 exec_lo, 0xffff
    ds_write_b64 v2, v[6:7] offset:{RCP+4088}
    s_mov_b64 exec, -1""")
def conv():
    acc=48; U=[80,144]; K=[112,176]; vUa,vKa=208,209
    lds_const_by_q(77,L_U)
    e(f"""v_and_b32 v2, 3, v0
    v_mul_u32_u24 v2, {UCP}, v2
    v_bfe_u32 v3, v0, 2, 2
    v_lshlrev_b32 v3, 7, v3
    v_lshrrev_b32 v4, 4, v0
    v_lshlrev_b32 v4, 4, v4
    v_add3_u32 v2, v2, v3, v4
    s_add_u32 s78, s77, 448
    v_add_u32 {V(vUa)}, s78, v2
    v_and_b32 v2, 15, v0
    v_lshlrev_b32 v2, 3, v2
    v_sub_u32 v2, v4, v2
    v_and_b32 v3, 1, v0
    v_mul_u32_u24 v3, {RCP-8}, v3
    v_sub_u32 v2, v2, v3
    s_add_u32 s78, s76, {4152-3584+RCP-8}
    v_add_u32 {V(vKa)}, s78, v2""")
    for i in range(32): e(f"v_mov_b32 v{acc+i}, 0")
    e("s_waitcnt vmcnt(0) lgkmcnt(0)")
    def rd(s):
        r=[]
        for m in range(8):
            r.append(f"ds_read_b128 {V(K[s]+4*m,4)}, {V(vKa)} offset:{512*(7-m)}")
            r.append(f"ds_read_b128 {V(U[s]+4*m,4)}, {V(vUa)} offset:{512*m}")
        r.append(f"v_add_u32 {V(vKa)}, -64, {V(vKa)}\nv_add_u32 {V(vUa)}, -64, {V(vUa)}")
        return r
    for x in rd(0): e(x)
    e(f"s_mov_b32 s{sLoop}, 4\nL_cv:")
    body0=len(L)
    for s in range(2):
        nx=rd(1-s)
        order=sorted([(ii,m) for ii in range(8) for m in range(8-ii)], key=lambda p:(max(p),p))
        waited=-1; k=0
        e("s_waitcnt lgkmcnt(0)")
        for n,(ii,m) in enumerate(order):
            e(f"v_mfma_f32_16x16x32_bf16 {V(acc+4*(ii+m),4)}, {V(U[s]+4*m,4)}, {V(K[s]+4*ii,4)}, {V(acc+4*(ii+m),4)}")
            if k<len(nx): e(nx[k]); k+=1
        assert k==len(nx)
    e(f"s_sub_u32 s{sLoop}, s{sLoop}, 1\ns_cmp_lg_u32 s{sLoop}, 0\ns_cbranch_scc1 L_cv")
    LOOPS.append((body0,len(L)))
    lds_const_by_q(76,L_YS)
    e(f"""v_lshrrev_b32 v2, 4, v0
    v_lshlrev_b32 v2, 7, v2
    v_and_b32 v3, 15, v0
    v_lshlrev_b32 v3, 3, v3
    v_add3_u32 v2, v2, v3, s76
    s_waitcnt lgkmcnt(0)""")
    for c in range(8):
        e(f"v_cvt_pk_bf16_f32 v{80+2*c}, v{acc+4*c}, v{acc+4*c+1}\nv_cvt_pk_bf16_f32 v{81+2*c}, v{acc+4*c+2}, v{acc+4*c+3}")
    for c in range(8): e(f"ds_write_b64 v2, {V(80+2*c,2)} offset:{512*c}")

def kv_stage_dma_list(stage, slotvals, n=7):
    out=[]
    for m in range(n):
        pre=f"s_add_u32 s84, {S(sQ)}, {4*m}"
        if 4*m+3>25: pre+=f"\ns_min_u32 s84, s84, 25"
        pre+=f"\ns_lshl_b32 s84, s84, 10\ns_add_u32 m0, s84, s89\ns_add_u32 s84, s84, s88"
        out.append((pre, f"buffer_load_dwordx4 {V(vL16)}, {S(sWS,4)}, s84 offen sc1 lds"))
    return out
def kv_stage_scalars(stage, slotvals, half=None):
    if half is None:
        e(f"s_mul_i32 s88, {S(sB)}, {32*TILE}\ns_add_u32 s88, s88, {WS_KV+stage*8*TILE}\n"+selb(89,slotvals))
    else:
        e(f"s_mov_b32 s88, {WS_KV+half*32*TILE+stage*8*TILE}\ns_mov_b32 s89, {slotvals[half]}")

def stats_check():
    for i in range(4): e(f"s_mov_b32 s76, {WS_ST+1024*i}\nbuffer_load_dwordx4 {V(48+4*i,4)}, {V(vL16)}, {S(sWS,4)}, s76 offen sc1")
    e("s_waitcnt vmcnt(0)")
    e("v_max_u32 v48, v48, v52\nv_max_u32 v56, v56, v60\nv_max_u32 v49, v49, v53\nv_max_u32 v57, v57, v61")
    e("v_max3_u32 v50, v50, v51, v54\nv_max3_u32 v58, v58, v59, v55\nv_max3_u32 v50, v50, v62, v63")
    e("v_max_u32 v48, v48, v56\nv_max_u32 v49, v49, v57\nv_max_u32 v50, v50, v58")
    for sh in (1,2,4,8):
        e("s_nop 0")
        for r in (48,49,50): e(f"v_max_u32_dpp v{r}, v{r}, v{r} row_ror:{sh} row_mask:0xf bank_mask:0xf")
    for op in ("v_permlane16_swap_b32","v_permlane32_swap_b32"):
        e("v_mov_b32 v52, v48\nv_mov_b32 v53, v49\nv_mov_b32 v54, v50\ns_nop 1")
        e(f"{op} v48, v52\n{op} v49, v53\n{op} v50, v54\ns_nop 1")
        e("v_max_u32 v48, v48, v52\nv_max_u32 v49, v49, v53\nv_max_u32 v50, v50, v54")
    thr = 1e-30 if OPT['force_fb'] else 48.0*48.0/2.2
    import struct
    tb=struct.unpack('<I',struct.pack('<f',thr))[0]
    e(f"""v_add_f32 v48, v48, v49
    v_mul_f32 v48, v48, {V(vN)}
    s_mov_b32 s76, {tb:#x}
    s_mov_b32 s77, 0x67800000
    v_cmp_nle_f32 vcc, v48, s76
    v_cmp_nle_f32 s[78:79], v50, s77
    s_nop 1
    s_or_b64 vcc, vcc, s[78:79]
    s_cbranch_vccz L_nofb
    v_mov_b32 v2, {L_FLAG}
    v_mov_b32 v3, 1
    ds_write_b32 v2, v3
    L_nofb:""")

SA,SB,PA,PB,OA,OB,K1,K2,VV=48,80,112,128,144,160,176,184,188
NA,NB=204,220
PAIR=2*TILE
def valu_half(Sv,Pv):
    ex=[f"v_exp_f32 v{Sv+i}, v{Sv+i}" for i in range(16)]
    c=[f"v_cvt_pk_bf16_f32 v{Pv+i}, v{Sv+2*i}, v{Sv+2*i+1}" for i in range(8)]
    return [ex[0],ex[1],ex[2],ex[3],ex[4],ex[5],c[0],ex[6],ex[7],c[1],ex[8],ex[9],c[2],ex[10],ex[11],c[3],ex[12],ex[13],c[4],ex[14],ex[15],c[5],c[6],c[7]]
def qk(Sm,q1,q2,C=None):
    c0="0" if C is None else V(C,16)
    return [f"v_mfma_f32_32x32x16_bf16 {V(Sm,16)}, {V(K1,4)}, {V(q1,4)}, {c0}",
            f"v_mfma_f32_32x32x16_bf16 {V(Sm+16,16)}, {V(K1+4,4)}, {V(q1,4)}, {c0}",
            f"v_mfma_f32_32x32x4bf16_1k {V(Sm,32)}, {V(K2,2)}, {V(q2,2)}, {V(Sm,32)}"]
def pv(Om,Pm,first=False):
    return [f"v_mfma_f32_32x32x16_bf16 {V(Om,16)}, {V(VV+4*i,4)}, {V(Pm+4*i,4)}, {'0' if (first and i==0) else V(Om,16)}" for i in range(4)]
def kreads(t):
    sl=(t>>2)%3; o=(t&3)*PAIR
    return [f"ds_read_b128 {V(K1,4)}, {V(vKV[sl])} offset:{o}", f"ds_read_b128 {V(K1+4,4)}, {V(vKV[sl])} offset:{o+TILE}", f"ds_read_b64 {V(K2,2)}, {V(vK2[sl])} offset:{o}"]
def vreads(t):
    sl=(t>>2)%3; o=(t&3)*PAIR
    return [f"ds_read_b128 {V(VV+4*i,4)}, {V(vKV[sl])} offset:{o+(i>>1)*TILE+1024+(i&1)*1024}" for i in range(4)]
POS=(0,4,14,22,28,34,40)
def phase(Sv,Pv,mf,after,pre=None):
    v=valu_half(Sv,Pv)+valu_half(Sv+16,Pv+8)
    for i in range(len(v)):
        for k,p in enumerate(POS):
            if p==i:
                if pre and pre.get(k): e(pre[k])
                if mf[k]: e(mf[k])
                for x in after.get(k,[]): e(x)
        e(v[i])
def wo_dma_list(first_quarter, slotvals):
    out=[]
    for m in range(7):
        pre=f"s_add_u32 s84, {S(sQ)}, {4*m}"
        if 4*m+3>26: pre+="\ns_min_u32 s84, s84, 26"
        pre+=f"\ns_mul_i32 s85, s84, 960\ns_add_u32 m0, s85, s89\ns_mul_i32 s84, s84, 7680\ns_add_u32 s84, s84, s88"
        out.append((pre, f"s_mov_b32 exec_hi, 0x0fffffff\nbuffer_load_dwordx4 {V(vP10)}, {S(sWO,4)}, s84 offen lds\ns_mov_b32 exec_hi, -1"))
    return out
def wo_scalars(first_quarter, slotvals):
    e(f"""s_add_u32 s88, {S(sB)}, {first_quarter}
    s_mul_i32 s88, s88, {160*1280}
    s_mul_i32 s89, {S(sHG)}, 160
    s_add_u32 s88, s88, s89""")
    e(selb(89,slotvals))
def attention():
    for x in kreads(0): e(x)
    e("s_waitcnt lgkmcnt(0)")
    m=qk(SA,Qa1,Qa2); e(m[0]); e(m[1]); nop(10); e(m[2]); nop(20)
    extra={}
    def sched(items,t0):
        for k,it in enumerate(items): extra.setdefault(t0+k//2,[]).append(it)
    for t in range(16):
        mf=qk(SB,Qb1,Qb2)+(pv(OB,PB,t==1) if t>=1 else [None]*4)
        after={}
        if t<15:
            kr=kreads(t+1)
            for k in range(3): after[k]=[kr[k]]
        vr=vreads(t)
        for k in range(4): after[3+k]=[vr[k]]
        if t in (3,7,11):
            cnt={3:6,7:4,11:0}[t]
            after[0]=[f"s_waitcnt vmcnt({cnt})","s_barrier"]+after[0]
        pre={}
        if t==0:
            pre[0]="s_setprio 1"
        else: pre[0]="s_setprio 1"
        phase(SA,PA,mf,after,pre)
        if t==0: kv_stage_scalars(2,L_Z); sched(kv_stage_dma_list(2,L_Z),0)
        if t==4: sched([(f"s_mov_b32 s84, {i*64*2560}", f"buffer_store_dwordx2 {V(vY+2*i,2)}, {V(vYst)}, {S(sOUT,4)}, s84 offen") for i in range(4)],4)
        if t==7: kv_stage_scalars(3,L_X); sched(kv_stage_dma_list(3,L_X),7)
        if t==11: wo_scalars(0,L_Y); sched(wo_dma_list(0,L_Y),11)
        mf=(qk(SA,Qa1,Qa2) if t<15 else [None]*3)+pv(OA,PA,t==0)
        after={}; pre={}
        pre[0]="s_setprio 0\n"+("s_waitcnt lgkmcnt(4)" if t<15 else "")
        pre[3]="s_waitcnt lgkmcnt(0)"
        ex=extra.get(t,[])
        for k,(p,d) in enumerate(ex):
            if k==0: pre[0]=p+"\n"+pre[0]; after[0]=[d]
            else: after.setdefault(0,[]).append(p); after[1]=[d]
        phase(SB,PB,mf,after,pre)
    nop(2)
    for x in pv(OB,PB): e(x)
    e("s_setprio 0")

def fallback():
    e(f"""s_mul_i32 s88, {S(sB)}, {32*TILE}
    s_add_u32 s88, s88, {WS_KV}
    v_lshrrev_b32 v2, 5, v0
    v_mul_u32_u24 v2, {TILE}, v2
    v_and_b32 v3, 31, v0
    v_lshlrev_b32 v3, 3, v3
    v_add3_u32 v4, v2, v3, 0
    v_mov_b32 v6, 0xff800000
    v_mov_b32 v7, 0xff800000""")
    for i in range(4): e(f"s_mov_b32 s84, {i*64*2560}\nbuffer_store_dwordx2 {V(vY+2*i,2)}, {V(vYst)}, {S(sOUT,4)}, s84 offen")
    def kload():
        e(f"""buffer_load_dwordx4 {V(K1,4)}, {V(vL16)}, {S(sWS,4)}, s84 offen sc1
        buffer_load_dwordx4 {V(K1+4,4)}, {V(vL16)}, {S(sWS,4)}, s84 offen offset:{TILE} sc1
        buffer_load_dwordx2 {V(K2,2)}, v4, {S(sWS,4)}, s84 offen offset:3072 sc1""")
    e(f"s_mov_b32 s84, s88\ns_mov_b32 s{sLoop}, 16\nL_fb1:")
    kload(); e("s_waitcnt vmcnt(0)")
    for Sm,q1,q2 in ((SA,Qa1,Qa2),(SB,Qb1,Qb2)):
        m=qk(Sm,q1,q2); e(m[0]); e(m[1]); nop(10); e(m[2])
    nop(20)
    for Sm,r in ((SA,6),(SB,7)):
        for i in range(16): e(f"v_max3_f32 v{r}, v{r}, v{Sm+2*i}, v{Sm+2*i+1}")
    e(f"s_add_u32 s84, s84, {PAIR}\ns_sub_u32 s{sLoop}, s{sLoop}, 1\ns_cmp_lg_u32 s{sLoop}, 0\ns_cbranch_scc1 L_fb1")
    for r in (6,7):
        e(f"v_mov_b32 v5, v{r}\ns_nop 1\nv_permlane32_swap_b32 v{r}, v5\ns_nop 1\nv_max_f32 v{r}, v{r}, v5")
    e(f"""s_lshl_b32 s76, {S(sWv)}, 9
    v_lshlrev_b32 v2, 3, v0
    v_add_u32 v3, s76, v2
    ds_write_b64 v3, v[6:7] offset:0
    s_xor_b32 s76, s76, 2048
    v_add_u32 v3, s76, v2
    s_waitcnt lgkmcnt(0)
    s_barrier
    ds_read_b64 v[8:9], v3
    s_waitcnt lgkmcnt(0)
    v_max_f32 v6, v6, v8
    v_max_f32 v7, v7, v9""")
    for i in range(16): e(f"v_sub_f32 v{NA+i}, 0, v6\nv_sub_f32 v{NB+i}, 0, v7\nv_mov_b32 v{OA+i}, 0\nv_mov_b32 v{OB+i}, 0")
    e(f"s_mov_b32 s84, s88\ns_mov_b32 s{sLoop}, 16\nL_fb2:")
    kload()
    e(f"s_add_u32 s85, s84, 1024")
    for i in range(4): e(f"buffer_load_dwordx4 {V(VV+4*i,4)}, {V(vL16)}, {S(sWS,4)}, s85 offen offset:{(i&1)*1024} sc1" + ("\ns_add_u32 s85, s85, %d"%TILE if i==1 else ""))
    e("s_waitcnt vmcnt(0)")
    for Sm,q1,q2,N in ((SA,Qa1,Qa2,NA),(SB,Qb1,Qb2,NB)):
        m=qk(Sm,q1,q2,N); e(m[0]); e(m[1]); nop(10); e(m[2])
    nop(20)
    for Sm,Pm,Om in ((SA,PA,OA),(SB,PB,OB)):
        for x in valu_half(Sm,Pm)+valu_half(Sm+16,Pm+8): e(x)
        nop(2)
        for x in pv(Om,Pm): e(x)
    e(f"s_add_u32 s84, s84, {PAIR}\ns_sub_u32 s{sLoop}, s{sLoop}, 1\ns_cmp_lg_u32 s{sLoop}, 0\ns_cbranch_scc1 L_fb2")
    e("s_barrier")
    wo_scalars(0,L_Y)
    for p,d in wo_dma_list(0,L_Y): e(p); e(d)

def tail():
    EX=L_X[0]
    srd(sOUT,28,5242880)
    e(f"s_cmp_eq_u32 {S(sB)}, 0\ns_cbranch_scc1 L_noswap"); nop(12)
    for i in range(12): e(f"v_swap_b32 v{OA+i}, v{OB+i}")
    e("L_noswap:")
    e(f"""s_mul_i32 s76, {S(sWv)}, 3072
    s_add_u32 s76, s76, {EX}
    v_add_u32 v2, s76, {V(vL16)}
    s_xor_b32 s77, {S(sWv)}, 4
    s_mul_i32 s77, s77, 3072
    s_add_u32 s77, s77, {EX}
    v_add_u32 v3, s77, {V(vL16)}"""); nop(8)
    e("s_barrier")
    for i in range(3): e(f"ds_write_b128 v2, {V(OB+4*i,4)} offset:{1024*i}")
    e("s_waitcnt lgkmcnt(0)\ns_barrier")
    for i in range(3): e(f"ds_read_b128 {V(48+4*i,4)}, v3 offset:{1024*i}")
    wo_scalars(2,L_Z)
    e("s_waitcnt lgkmcnt(0)")
    e(f"v_add_f32 v{OA+8}, v{OA+8}, v56")
    for i in list(range(8))+[9,10,11]: e(f"v_add_f32 v{OA+i}, v{OA+i}, v{48+i}")
    e(f"v_mov_b32 v4, v{OA+8}\nv_mov_b32 v5, v{OA+8}\ns_nop 1\nv_permlane32_swap_b32 v4, v5\ns_nop 1\nv_rcp_f32 v5, v5\ns_nop 0")
    for i in range(12): e(f"v_mul_f32 v{OA+i}, v{OA+i}, v5")
    for i in range(6): e(f"v_cvt_pk_bf16_f32 v{48+i}, v{OA+2*i}, v{OA+2*i+1}")
    for i,a in enumerate((vOA0,vOA1,vOA2)): e(f"buffer_store_dwordx2 {V(48+2*i,2)}, {V(a)}, {S(sWS,4)}, 0 offen sc1")
    for p,d in wo_dma_list(2,L_Z): e(p); e(d)
    stamp("o_stored")
    e("s_waitcnt vmcnt(7)\ns_barrier")
    e(f"""s_cmp_lg_u32 {S(sWv)}, 0
    s_cbranch_scc1 L_noflag
    s_lshl_b32 s76, {S(sRB)}, 6
    s_lshl_b32 s77, {S(sHG)}, 2
    s_add_u32 s76, s76, s77
    s_add_u32 s76, s76, {WS_OF}
    v_mov_b32 v2, 0
    v_mov_b32 v3, 1
    s_mov_b64 exec, 1
    buffer_store_dword v3, v2, {S(sWS,4)}, s76 offen sc1
    s_mov_b64 exec, -1
    L_noflag:""")
    WA,WB,vOl,vOs,vOr,vOg,vFl=10,11,12,13,14,15,16
    e(selb(76,(L_Y[0],L_Z[0]))); e(selb(77,(L_Y[1],L_Z[1])))
    e(f"""    v_lshrrev_b32 v2, 5, v0
    v_lshlrev_b32 v2, 4, v2
    v_bfe_u32 v3, v0, 4, 1
    v_lshlrev_b32 v3, 2, v3
    v_bfe_u32 v4, v0, 2, 2
    v_add3_u32 v2, v2, v3, v4
    v_mul_u32_u24 v2, 160, v2
    v_and_b32 v3, 3, v0
    v_lshlrev_b32 v3, 3, v3
    v_add3_u32 {V(WA)}, v2, v3, s76
    v_add3_u32 {V(WB)}, v2, v3, s77
    s_mul_i32 s76, {S(sRB)}, 81920
    s_mul_i32 s77, {S(sQ)}, 20480
    s_add_u32 s76, s76, s77
    s_mul_i32 s77, {S(sB)}, 10240
    s_add_u32 s76, s76, s77
    s_add_u32 s76, s76, {WS_O}
    v_add_u32 {V(vOl)}, s76, {V(vL16)}
    s_lshl_b32 s76, {S(sQ)}, 4
    v_and_b32 v2, 15, v0
    v_add_u32 v2, s76, v2
    v_mul_u32_u24 v2, 160, v2
    v_lshrrev_b32 v3, 4, v0
    v_lshlrev_b32 v3, 3, v3
    v_add_u32 v2, v2, v3
    v_add_u32 {V(vOs)}, {L_X[1]}, v2
    s_mul_i32 s76, {S(sWv)}, 960
    s_add_u32 s76, s76, {L_X[1]}
    v_add_u32 {V(vOr)}, s76, {V(vL16)}""")
    div10(2,0)
    e(f"""v_mul_u32_u24 v3, 1280, v2
    v_add_u32 {V(vOg)}, {V(vP10)}, v3
    v_and_b32 v2, 7, v0
    v_lshlrev_b32 {V(vFl)}, 2, v2
    s_waitcnt vmcnt(0)
    s_barrier""")
    WF=64; OF=20; ACC=204
    def wr(sp,slot):
        base=WA if sp<5 else WB; o=(sp%5)*5120
        r=[]
        for ct in range(5):
            b=WF+20*slot+4*ct
            r+= [f"ds_read_b64_tr_b16 {V(b,2)}, {V(base)} offset:{o+32*ct}", f"ds_read_b64_tr_b16 {V(b+2,2)}, {V(base)} offset:{o+32*ct+1280}"]
        return r
    for sp in range(7):
        for x in wr(sp,sp): e(x)
    stamp("pre_poll")
    e(f"""s_lshl_b32 s76, {S(sRB)}, 6
    s_add_u32 s76, s76, {WS_OF}
    s_mov_b32 s{sSpin}, 0
    L_poll2:
    buffer_load_dword v3, {V(vFl)}, {S(sWS,4)}, s76 offen sc1
    s_add_u32 s{sSpin}, s{sSpin}, 1
    s_cmp_gt_u32 s{sSpin}, 0x40000
    s_cbranch_scc1 L_poll2_done
    s_waitcnt vmcnt(0)
    v_cmp_ne_u32 vcc, 1, v3
    s_cbranch_vccnz L_poll2
    L_poll2_done:""")
    stamp("polled")
    for sp in range(10):
        if sp==4: e(f"v_add_u32 {V(vOl)}, 4096, {V(vOl)}")
        if sp==8: e(f"v_add_u32 {V(vOl)}, 4096, {V(vOl)}")
        e(f"buffer_load_dwordx4 {V(OF+4*sp,4)}, {V(vOl)}, {S(sWS,4)}, 0 offen offset:{1024*(sp%4)} sc1")
    for sp in range(10):
        slot=sp%7
        w=f"s_waitcnt vmcnt({9-sp})"
        if sp==0: w+=" lgkmcnt(0)"
        if sp==7: w+=" lgkmcnt(10)"
        if sp==8: w+=" lgkmcnt(10)"
        if sp==9: w+=" lgkmcnt(0)"
        e(w)
        for ct in range(5):
            e(f"v_mfma_f32_16x16x32_bf16 {V(ACC+4*ct,4)}, {V(WF+20*slot+4*ct,4)}, {V(OF+4*sp,4)}, {'0' if sp==0 else V(ACC+4*ct,4)}")
        if sp<3:
            for x in wr(sp+7,slot): e(x)
    EX2=L_X[0]
    e(f"""s_mul_i32 s76, {S(sWv)}, 3072
    s_add_u32 s76, s76, {EX2}
    v_add_u32 v2, s76, {V(vL16)}
    s_xor_b32 s77, {S(sWv)}, 4
    s_mul_i32 s77, s77, 3072
    s_add_u32 s77, s77, {EX2}
    v_add_u32 v3, s77, {V(vL16)}
    s_cmp_eq_u32 {S(sB)}, 0
    s_cbranch_scc0 L_red_b"""); nop(8)
    def red(send,keep,lab):
        for i,ct in enumerate(send): e(f"ds_write_b128 v2, {V(ACC+4*ct,4)} offset:{1024*i}")
        e("s_waitcnt lgkmcnt(0)\ns_barrier")
        for i,ct in enumerate(keep): e(f"ds_read_b128 {V(48+4*i,4)}, v3 offset:{1024*i}")
        for i,ct in enumerate(keep):
            e(f"s_waitcnt lgkmcnt({len(keep)-1-i})")
            for r in range(4): e(f"v_add_f32 v{ACC+4*ct+r}, v{ACC+4*ct+r}, v{48+4*i+r}")
            e(f"v_cvt_pk_bf16_f32 v{64+2*i}, v{ACC+4*ct}, v{ACC+4*ct+1}\nv_cvt_pk_bf16_f32 v{65+2*i}, v{ACC+4*ct+2}, v{ACC+4*ct+3}")
            e(f"ds_write_b64 {V(vOs)}, {V(64+2*i,2)} offset:{32*ct}")
    red((3,4),(0,1,2),'a'); e("s_branch L_red_j\nL_red_b:"); nop(8)
    red((0,1,2),(3,4),'b'); e("L_red_j:")
    e(f"""s_lshl_b32 s76, {S(sRB)}, 6
    s_mul_i32 s77, {S(sWv)}, 6
    s_add_u32 s76, s76, s77
    s_mul_i32 s76, s76, 2560
    s_mul_i32 s77, {S(sHG)}, 160
    s_add_u32 s76, s76, s77
    s_add_u32 s77, s76, {48*2560}
    s_waitcnt lgkmcnt(0)
    s_barrier
    ds_read_b128 v[48:51], {V(vOr)}
    ds_read_b128 v[52:55], {V(vOr)} offset:{8*960}
    s_mov_b32 exec_hi, 0x0fffffff
    s_waitcnt lgkmcnt(1)
    buffer_store_dwordx4 v[48:51], {V(vOg)}, {S(sOUT,4)}, s76 offen
    s_cmp_ge_u32 {S(sWv)}, 3
    s_cbranch_scc1 {'L_fin' if OPT['stamp'] else 'L_exit'}
    s_cmp_eq_u32 {S(sWv)}, 2
    s_cselect_b32 exec_hi, 0xff, exec_hi
    s_waitcnt lgkmcnt(0)
    buffer_store_dwordx4 v[52:55], {V(vOg)}, {S(sOUT,4)}, s77 offen""")

def main():
    entry()
    if OPT['stamp']: e("v_mov_b32 v253, 0")
    stamp("issued0")
    e(f"s_cmp_eq_u32 {S(sB)}, 0\ns_cbranch_scc0 L_B0")
    q_wave_prologue()
    common_addr()
    srd(sWO,12,819200); srd(sOUT,28,5242880)
    e("s_waitcnt vmcnt(10)\ns_barrier")
    stamp("beta_a")
    u_transpose()
    chunk_scalars(sKC); chunk_next(sKC); slot_scalars(SLOT[1])
    for pre,d in chunk_dma_list(sSl): e(pre); e(d)
    e("s_waitcnt vmcnt(10)\ns_barrier")
    stamp("beta_b")
    q_proj()
    stamp("qproj_done")
    e("s_barrier\ns_barrier")
    for half in range(2):
        kv_stage_scalars(0,L_X,half)
        for p,d in kv_stage_dma_list(0,L_X): e(p); e(d)
    stats_check()
    e("s_waitcnt vmcnt(0) lgkmcnt(0)")
    e("s_branch L_J1")
    e("L_B0:")
    kv_addr()
    common_addr()
    srd(sWO,12,819200); srd(sOUT,28,5242880); srd(sDBG,30,256)
    e("s_waitcnt vmcnt(0)\ns_barrier")
    stamp("beta_a")
    kv_proj()
    stamp("kv_done")
    e(f"s_cmp_eq_u32 {S(sConv)}, 0\ns_cbranch_scc1 L_B_nosetup")
    kgen_dt(); kgen_setup()
    e("L_B_nosetup:\ns_waitcnt vmcnt(0)\ns_barrier")
    stamp("beta_b")
    e(f"""s_cmp_lg_u32 {S(sQ)}, 0
    s_cbranch_scc1 L_nosig
    s_and_b32 s76, s2, 63
    s_lshl_b32 s76, s76, 2
    v_mov_b32 v2, 0
    v_mov_b32 v3, 1
    s_mov_b64 exec, 1
    buffer_atomic_add v3, v2, {S(sDBG,4)}, s76 offen sc1
    s_mov_b64 exec, -1
    L_nosig:""")
    e(f"s_cmp_eq_u32 {S(sConv)}, 0\ns_cbranch_scc0 L_B_conv")
    e("s_barrier\ns_barrier\ns_barrier\ns_barrier")
    poll_sync1_lab="x"
    e("s_branch L_B_poll\nL_B_conv:")
    kgen_loop()
    stamp("kgen_done")
    kgen_finish()
    e("L_B_poll:")
    poll_sync1()
    stamp("polled1")
    e(f"s_cmp_eq_u32 {S(sConv)}, 0\ns_cbranch_scc1 L_B_nou")
    u_dma()
    e("L_B_nou:\ns_barrier")
    e(f"""s_mul_i32 s76, {S(sQ)}, {QXP}
    s_add_u32 s76, s76, {L_QX}
    v_add_u32 v2, s76, {V(vL16)}
    ds_read_b128 v[10:13], v2
    ds_read_b128 v[14:17], v2 offset:1024
    ds_read_b128 v[18:21], v2 offset:2048
    s_waitcnt lgkmcnt(0)
    s_barrier""")
    e(f"s_cmp_eq_u32 {S(sConv)}, 0\ns_cbranch_scc1 L_J1")
    expand_R()
    stamp("conv_start")
    conv()
    e("s_waitcnt lgkmcnt(0)")
    stamp("conv_done")
    e("L_J1:\ns_barrier")
    e(f"""s_lshl_b32 s76, {S(sWv)}, 9
    v_bfe_u32 v2, v0, 2, 2
    v_and_b32 v3, 1, v2
    v_mul_u32_u24 v3, {L_YS[1]-L_YS[0]}, v3
    v_lshrrev_b32 v2, 1, v2
    v_mul_u32_u24 v2, {L_YS[2]-L_YS[0]}, v2
    v_add3_u32 v2, v2, v3, s76
    v_lshrrev_b32 v3, 4, v0
    v_lshlrev_b32 v3, 5, v3
    v_and_b32 v4, 3, v0
    v_lshlrev_b32 v4, 3, v4
    v_add3_u32 v2, v2, v3, v4
    v_mov_b32 v3, {L_FLAG}
    ds_read_b32 v5, v3""")
    assert L_YS[3]-L_YS[2]==L_YS[1]-L_YS[0] and L_YS[0]==0
    for i in range(4): e(f"ds_read_b64_tr_b16 {V(vY+2*i,2)}, v2 offset:{128*i}")
    e("s_waitcnt lgkmcnt(0)\nv_readfirstlane_b32 s76, v5\ns_barrier")
    stamp("y_read")
    e("s_cmp_lg_u32 s76, 0\ns_cbranch_scc1 L_fallback")
    kv_stage_scalars(1,L_Y)
    for p,d in kv_stage_dma_list(1,L_Y): e(p); e(d)
    attention()
    e("L_tail:")
    stamp("attn_done")
    tail()
    if OPT['stamp']:
        e("L_fin:\ns_waitcnt vmcnt(0)"); stamp("end"); stamp_dump()
    e("L_exit:\ns_endpgm")
    e("L_fallback:")
    fallback()
    e("s_branch L_tail")
    e("L_codeend:")

main()
hdr=open("cdna_kernels/"+NAME+".s.ref").read().split("; Override launch")[0]
out=hdr+f"""; @launch grid=(256,1,1) block=(512,1,1) lds={LDS_SIZE}
.amdgcn_target "amdgcn-amd-amdhsa--gfx950"
.text
.globl {NAME}_kernel
.p2align 8
.type {NAME}_kernel,@function
{NAME}_kernel:
"""+"\n".join(L)+f"""
    s_endpgm
.section .rodata,"a"
.p2align 6
.amdhsa_kernel {NAME}_kernel
  .amdhsa_next_free_vgpr 256
  .amdhsa_next_free_sgpr 102
  .amdhsa_accum_offset 256
  .amdhsa_group_segment_fixed_size 0
  .amdhsa_kernarg_size 120
  .amdhsa_user_sgpr_count 2
  .amdhsa_user_sgpr_kernarg_segment_ptr 1
  .amdhsa_system_sgpr_workgroup_id_x 1
  .amdhsa_float_denorm_mode_32 3
.end_amdhsa_kernel
"""
path=sys.argv[1] if len(sys.argv)>1 else "cdna_kernels/"+NAME+".s"
open(path,"w").write(out)
errs=hz.check(L,"lin")
for a,b in LOOPS: errs+=hz.check(L[a:b]+L[a:b],f"loop{a}")
for x in sorted(set(errs)): print("HAZARD",x)
if OPT['stamp']: open(path+".stamps","w").write("\n".join(STAMPS))
print("lines",len(L))
```

```python
import sys, math
import hz
NAME="concat_heads__grouped_kv_mqa__ssm_conv_s4d__prompt"
OPT=dict(stamp=0, force_fb=0)
for a in sys.argv[2:]:
    k,v=a.split('='); OPT[k]=int(v)

L=[]
def e(s):
    for x in s.split('\n'):
        x=x.strip()
        if x: L.append(('    ' if not x.endswith(':') else '')+x)
def V(a,n=1): return f"v{a}" if n==1 else f"v[{a}:{a+n-1}]"
def S(a,n=1): return f"s{a}" if n==1 else f"s[{a}:{a+n-1}]"
def nop(n):
    while n>0:
        k=min(n,16); e(f"s_nop {k-1}"); n-=k

WS_UT0=0; WS_UT1=0x2A0000; UTP=4224; WS_KV=0x540000; WS_ST=0x580000; WS_OF=0x582000; WS_O=0x600000; WS_SIZE=0x910000
TILE=3328
SLOT=[0,40960,81920]; WQO=16384
L_WK=81920; L_WV=107520; L_X8=133120; L_UT=143360; L_STG=153920
L_KG=122880; KGP=4608; L_QX=145408; QXP=3328
L_U=[0,18560,81920,100480]; UCP=4640
L_R=[37120,45568,119040,127488]; RCP=4224
L_X=[54016,135936]; L_Y=[0,80640]; L_Z=[26624,107264]
L_FLAG=162560
L_YS=[L_U[b]+64*(b>>1) for b in range(4)]
LDS_SIZE=163840
sX,sWQ,sWKV,sWO,sU,sWS,sOUT,sDBG=36,40,44,48,52,56,60,64
sWv,sQ,sB,sRB,sHG,sRot,sConv,sCI=68,69,70,71,72,73,74,75
sT=list(range(76,96))
sLoop=96; sSpin=97; sA=98; sBb=99
sEx=100
vLane,vL16=0,1
T=list(range(2,10))
Qa1,Qa2,Qb1,Qb2=10,14,16,20
vN,vOA0,vOA1,vOA2=22,23,24,25
vKV=[26,27,28]; vK2=[29,30,31]
vYst,vP10=32,33
vY=34
vLA,vAI,vCR,vCI,vLDT,vD=42,43,44,45,46,47

stamp_i=[0]
def stamp(name, waves=(0,4)):
    if not OPT['stamp']: return
    if name not in STAMPS: STAMPS.append(name)
    i=STAMPS.index(name)
    e(f"s_memrealtime s[92:93]\ns_waitcnt lgkmcnt(0)\nv_writelane_b32 v253, s92, {i}")
def stamp_dyn(name,n,reg,down=None):
    if OPT['stamp']<2: return
    if name+"0" not in STAMPS:
        for k in range(n): STAMPS.append(name+str(k))
    i=STAMPS.index(name+"0")
    if down is None: e(f"s_add_u32 s94, s{reg}, {i}")
    else: e(f"s_sub_u32 s94, {i+down}, s{reg}")
    e(f"s_memrealtime s[92:93]\ns_mov_b32 m0, s94\ns_waitcnt lgkmcnt(0)\nv_writelane_b32 v253, s92, m0")
def stamp_dump():
    if not OPT['stamp']: return
    e(f"""s_lshl_b32 s94, s2, 3
    s_add_u32 s94, s94, {S(sWv)}
    s_lshl_b32 s94, s94, 8
    s_add_u32 s94, s94, {0x880000}
    s_mov_b64 exec, -1
    v_lshlrev_b32 v252, 2, v0
    buffer_store_dword v253, v252, {S(sWS,4)}, s94 offen""")
STAMPS=[]

def srd(s, p, nbytes):
    e(f"s_mov_b32 s{s}, s{p}\ns_mov_b32 s{s+1}, s{p+1}\ns_mov_b32 s{s+2}, {nbytes}\ns_mov_b32 s{s+3}, 0x20000")
def dma(vaddr, srd_, soff, m0expr=None, sc1=False):
    e(f"buffer_load_dwordx4 {V(vaddr)}, {S(srd_,4)}, {soff} offen {'sc1 ' if sc1 else ''}lds")
def selb(dst,vals):
    d=vals[1]-vals[0]
    return f"s_mul_i32 s{dst}, {S(sB)}, {d}\ns_add_u32 s{dst}, s{dst}, {vals[0]}"
def div10(dst,src,tmp=None):
    e(f"v_mul_u32_u24 {V(dst)}, 0x199a, {V(src)}\nv_lshrrev_b32 {V(dst)}, 16, {V(dst)}")

def entry():
    e("s_cmp_ge_u32 s2, 256\ns_cbranch_scc1 L_exit")
    e("s_load_dwordx16 s[4:19], s[0:1], 0\ns_load_dwordx8 s[20:27], s[0:1], 64\ns_load_dwordx4 s[28:31], s[0:1], 96\ns_load_dwordx2 s[32:33], s[0:1], 112")
    e("s_getpc_b64 s[34:35]\nL_pc:")
    e(f"v_lshrrev_b32 v2, 6, v0\nv_and_b32 v0, 63, v0\nv_readfirstlane_b32 {S(sWv)}, v2")
    e(f"s_lshr_b32 s76, s2, 3\ns_and_b32 s77, s2, 7")
    e(f"s_cmp_lg_u32 {S(sWv)}, 7\ns_cbranch_scc1 L_nopf")
    e(f"s_lshl_b32 s78, s76, 10\nv_and_b32 v2, 7, v0\nv_lshlrev_b32 v2, 7, v2\nv_add_u32 v2, s78, v2\nv_min_u32 v2, L_codeend-L_pc-4, v2\nglobal_load_dword v254, v2, s[34:35]")
    e("L_nopf:")
    e(f"""s_and_b32 {S(sQ)}, {S(sWv)}, 3
    s_lshr_b32 {S(sB)}, {S(sWv)}, 2
    s_and_b32 s78, s76, 3
    s_lshl_b32 s79, s77, 2
    s_add_u32 {S(sRB)}, s79, s78
    s_lshr_b32 {S(sHG)}, s76, 2
    s_lshl_b32 s78, s78, 1
    s_add_u32 s78, s78, {S(sHG)}
    s_mul_i32 s79, s78, 52
    s_lshr_b32 s79, s79, 8
    s_mul_i32 s79, s79, 5
    s_sub_u32 {S(sRot)}, s78, s79
    s_cmp_lt_u32 {S(sHG)}, 5
    s_cselect_b32 {S(sConv)}, 1, 0
    s_lshl_b32 s79, {S(sHG)}, 5
    s_add_u32 {S(sCI)}, s79, {S(sRB)}""")
    e(f"v_lshlrev_b32 {V(vL16)}, 4, v0")
    div10(2,0)
    e(f"""v_mul_u32_u24 v3, 10, v2
    v_sub_u32 v3, v0, v3
    v_lshlrev_b32 v3, 4, v3
    v_mul_u32_u24 v2, 1280, v2
    v_add_u32 {V(vP10)}, v2, v3""")
    e(f"""s_and_b32 s78, {S(sWv)}, 1
    s_lshl_b32 s79, s78, 2
    v_lshrrev_b32 v5, 4, v0
    v_add_u32 v6, s79, v5
    v_lshlrev_b32 v7, 1, v6
    v_and_b32 v8, 15, v0
    v_xor_b32 v7, v7, v8
    v_lshlrev_b32 v7, 4, v7
    v_mul_u32_u24 v6, 1280, v6
    v_add_u32 v4, v6, v7""")
    e(f"""s_lshl_b32 s80, {S(sRB)}, 6
    s_mul_i32 s81, {S(sWv)}, 6
    s_add_u32 s80, s80, s81
    s_sub_u32 s80, s80, 1
    s_mul_i32 s80, s80, 1280
    v_add_u32 v6, s80, {V(vP10)}""")
    e("s_waitcnt lgkmcnt(0)")
    e(f"s_and_b32 s82, {S(sB)}, {S(sConv)}\ns_cmp_eq_u32 s82, 0\ns_cbranch_scc1 L_noparam")
    e(f"""s_lshl_b32 s82, {S(sCI)}, 2
    s_add_u32 s82, s82, {S(sQ)}
    s_lshl_b32 s83, s82, 8
    v_lshlrev_b32 v2, 2, v0
    v_add_u32 v2, s83, v2
    s_lshl_b32 s82, s82, 1
    v_mov_b32 v3, s82
    global_load_dword {V(vLA)}, v2, s[16:17]
    global_load_dword {V(vAI)}, v2, s[18:19]
    global_load_dword {V(vCR)}, v2, s[20:21]
    global_load_dword {V(vCI)}, v2, s[22:23]
    global_load_ushort {V(vLDT)}, v3, s[24:25]
    global_load_ushort {V(vD)}, v3, s[26:27]
    L_noparam:""")
    e(f"""s_cmp_eq_u32 {S(sB)}, 0
    s_cselect_b32 s{sWKV}, s8, s10
    s_cselect_b32 s{sWKV+1}, s9, s11
    s_mov_b32 s{sWKV+2}, 25600
    s_mov_b32 s{sWKV+3}, 0x20000
    s_mul_i32 s82, {S(sB)}, 25600
    s_lshl_b32 s83, {S(sQ)}, 10
    s_add_u32 s82, s82, s83
    s_add_u32 s82, s82, {L_WK}""")
    for m in range(6):
        e(f"s_add_u32 m0, s82, {4096*m}\ns_add_u32 s84, s83, {4096*m}")
        dma(vL16,sWKV,"s84")
    e(f"s_cmp_lg_u32 {S(sQ)}, 0\ns_cbranch_scc1 L_nowk7\ns_add_u32 m0, s82, {4096*6}\ns_add_u32 s84, s83, {4096*6}")
    dma(vL16,sWKV,"s84"); e("L_nowk7:")
    srd(sX,4,2621440)
    e(f"""s_lshl_b32 s82, {S(sRB)}, 3
    s_add_u32 s82, s82, {S(sHG)}
    s_mul_i32 s82, s82, 10240
    s_lshr_b32 s83, {S(sWv)}, 1
    s_lshl_b32 s84, s83, 8
    s_add_u32 s84, s84, s82
    s_lshl_b32 s83, s83, 11
    s_lshl_b32 s85, s78, 10
    s_add_u32 s83, s83, s85
    s_add_u32 m0, s83, {L_X8}""")
    srd(sU,14,2621440)
    dma(4,sX,"s84")
    e(f"s_cmp_ge_u32 {S(sWv)}, 2\ns_cbranch_scc1 L_nox8b\ns_add_u32 m0, s85, {L_X8+4*2048}\ns_add_u32 s84, s82, 1024")
    dma(4,sX,"s84"); e("L_nox8b:")
    e(f"""s_mul_i32 s82, {S(sHG)}, 160
    s_mul_i32 s83, {S(sWv)}, 960
    s_add_u32 m0, s83, {L_UT}
    s_mov_b32 exec_hi, 0x0fffffff""")
    dma(6,sU,"s82")
    e(f"s_cmp_ge_u32 {S(sWv)}, 3\ns_cbranch_scc1 L_noub\ns_add_u32 m0, s83, {L_UT+8*960}\nv_add_u32 v6, {48*1280}, v6")
    dma(6,sU,"s82"); e("L_noub:\ns_mov_b32 exec_hi, -1")
    srd(sWQ,6,819200)
    srd(sWS,32,WS_SIZE)

vXA=116; vWA=124; vXd=125; vWd=126
sXo,sWo=86,87
def chunk_scalars(c_expr_reg):
    e(f"""s_lshl_b32 s{sXo}, s{c_expr_reg}, 8
    s_add_u32 s{sXo}, s{sXo}, s88
    s_mul_i32 s{sWo}, s{c_expr_reg}, 163840
    s_add_u32 s{sWo}, s{sWo}, s89""")
def chunk_next(reg):
    e(f"s_add_u32 s{reg}, s{reg}, 1\ns_cmp_eq_u32 s{reg}, 5\ns_cselect_b32 s{reg}, 0, s{reg}")
def chunk_dma_list(slotreg):
    out=[]
    for m in range(4):
        out.append((f"s_add_u32 m0, s{slotreg}, {4096*m}\ns_add_u32 s84, s{sXo}, {m*16*1280}", f"buffer_load_dwordx4 {V(vXd)}, {S(sX,4)}, s84 offen lds"))
    for g2 in range(2):
        for p in range(3):
            out.append((f"s_add_u32 m0, s{slotreg+1}, {3072*g2+1024*p}\ns_add_u32 s84, s{sWo}, {g2*16*1280}", f"buffer_load_dwordx4 {V(vWd+p)}, {S(sWQ,4)}, s84 offen lds"))
    return out
sSl=90
def slot_scalars(slot_const=None, slot_reg=None):
    if slot_const is not None:
        e(f"s_lshl_b32 s{sSl}, {S(sQ)}, 10\ns_mul_i32 s{sSl+1}, {S(sQ)}, 6144\ns_add_u32 s{sSl}, s{sSl}, {slot_const}\ns_add_u32 s{sSl+1}, s{sSl+1}, {slot_const+WQO}")
    else:
        e(f"s_lshl_b32 s{sSl}, {S(sQ)}, 10\ns_mul_i32 s{sSl+1}, {S(sQ)}, 6144\ns_add_u32 s{sSl}, s{sSl}, s{slot_reg}\ns_add_u32 s{sSl+1}, s{sSl+1}, s{slot_reg}\ns_add_u32 s{sSl+1}, s{sSl+1}, {WQO}")
sKC=sA

def common_addr():
    e(selb(76,L_X)); e(selb(77,L_Y)); e(selb(78,L_Z))
    e(f"""    v_add_u32 {V(vKV[0])}, s76, {V(vL16)}
    v_add_u32 {V(vKV[1])}, s77, {V(vL16)}
    v_add_u32 {V(vKV[2])}, s78, {V(vL16)}
    v_lshrrev_b32 v2, 5, v0
    v_mul_u32_u24 v3, {TILE}, v2
    v_and_b32 v4, 31, v0
    v_lshlrev_b32 v5, 3, v4
    v_add_u32 v3, v3, v5
    v_add_u32 v3, 3072, v3
    v_add_u32 {V(vK2[0])}, s76, v3
    v_add_u32 {V(vK2[1])}, s77, v3
    v_add_u32 {V(vK2[2])}, s78, v3""")
    e(f"""s_mul_i32 s76, {S(sHG)}, 20
    s_and_b32 s77, {S(sQ)}, 1
    s_mul_i32 s77, s77, 10
    s_add_u32 s76, s76, s77
    s_mul_i32 s77, {S(sB)}, 5
    s_add_u32 s76, s76, s77
    s_mul_i32 s77, {S(sRB)}, 81920
    s_lshr_b32 s78, {S(sQ)}, 1
    s_mul_i32 s78, s78, 40960
    s_add_u32 s77, s77, s78
    s_add_u32 s77, s77, {WS_O}
    v_lshrrev_b32 v5, 4, v4
    v_mul_u32_u24 v5, 20480, v5
    v_and_b32 v6, 15, v0
    v_lshlrev_b32 v6, 4, v6
    v_add_u32 v5, v5, v6
    v_add_u32 v5, s77, v5""")
    for k,(dst,add,useh) in enumerate(((vOA0,0,1),(vOA1,2,1),(vOA2,4,0))):
        e(f"s_add_u32 s78, s76, {add}")
        if useh: e("v_add_u32 v6, s78, v2")
        else: e("v_mov_b32 v6, s78")
        e(f"""v_lshrrev_b32 v7, 3, v6
        v_lshlrev_b32 v7, 10, v7
        v_bfe_u32 v8, v6, 2, 1
        v_lshlrev_b32 v8, 9, v8
        v_add_u32 v7, v7, v8
        v_and_b32 v8, 1, v6
        v_lshlrev_b32 v8, 8, v8
        v_add_u32 v7, v7, v8
        v_bfe_u32 v8, v6, 1, 1
        v_lshlrev_b32 v8, 3, v8
        v_add3_u32 {V(dst)}, v7, v8, v5""")
    e(f"v_cmp_gt_u32 vcc, 32, v0\nv_mov_b32 v7, 0x7fffffff\ns_nop 0\nv_cndmask_b32 {V(vOA2)}, v7, {V(vOA2)}, vcc")
    e(f"""s_lshl_b32 s76, {S(sWv)}, 8
    v_add_u32 v2, s76, v0
    v_mul_u32_u24 v2, 2560, v2
    s_lshl_b32 s77, {S(sCI)}, 3
    s_add_u32 s77, s77, 1280
    s_cmp_eq_u32 {S(sConv)}, 0
    s_cselect_b32 s77, 0x40000000, s77
    v_add_u32 {V(vYst)}, s77, v2""")

def q_wave_prologue():
    e(f"""s_lshl_b32 s76, {S(sQ)}, 2
    v_lshrrev_b32 v2, 4, v0
    v_add_u32 v2, s76, v2
    v_and_b32 v3, 15, v0
    v_xor_b32 v3, v3, v2
    v_lshlrev_b32 v3, 4, v3
    v_mul_u32_u24 v2, 1280, v2
    v_add_u32 {V(vXd)}, v2, v3""")
    for p in range(3):
        e(f"""v_add_u32 v2, {64*p}, v0
        v_mul_u32_u24 v3, 0x1556, v2
        v_lshrrev_b32 v3, 16, v3
        v_mul_u32_u24 v4, 12, v3
        v_sub_u32 v4, v2, v4
        v_lshlrev_b32 v4, 4, v4
        v_mul_u32_u24 v3, 1280, v3
        v_add_u32 {V(vWd+p)}, v3, v4""")
    e(f"""s_mul_i32 s88, {S(sRB)}, 81920
    s_mul_i32 s89, {S(sHG)}, 160
    s_and_b32 s89, s89, 0xffffffc0
    s_mul_i32 s76, {S(sQ)}, 40960
    s_add_u32 s89, s89, s76
    s_mov_b32 s{sKC}, {S(sRot)}""")
    chunk_scalars(sKC); chunk_next(sKC); slot_scalars(SLOT[0])
    for pre,d in chunk_dma_list(sSl): e(pre); e(d)
    e(f"""s_lshr_b32 s76, {S(sQ)}, 1
    s_lshl_b32 s76, s76, 5
    v_and_b32 v2, 31, v0
    v_add_u32 v2, s76, v2
    v_lshrrev_b32 v3, 5, v0
    v_and_b32 v4, 15, v2
    v_xor_b32 v4, v4, v3
    v_lshlrev_b32 v4, 4, v4
    v_lshlrev_b32 v2, 8, v2
    v_add_u32 {V(vXA)}, v2, v4""")
    for st in range(1,8): e(f"v_xor_b32 {V(vXA+st)}, {32*st}, {V(vXA)}")
    e(f"""s_and_b32 s76, {S(sHG)}, 1
    s_lshl_b32 s76, s76, 5
    s_and_b32 s77, {S(sQ)}, 1
    s_mul_i32 s77, s77, 80
    s_add_u32 s76, s76, s77
    s_add_u32 s76, s76, {WQO}
    v_lshlrev_b32 v3, 3, v3
    v_bfe_u32 v4, v0, 2, 2
    v_add_u32 v3, v3, v4
    v_mul_u32_u24 v3, 192, v3
    v_bfe_u32 v4, v0, 4, 1
    v_lshlrev_b32 v4, 5, v4
    v_add_u32 v3, v3, v4
    v_and_b32 v4, 3, v0
    v_lshlrev_b32 v4, 3, v4
    v_add3_u32 {V(vWA)}, v3, v4, s76""")
    e(f"""v_lshrrev_b32 v2, 4, v0
    v_and_b32 v3, 3, v0
    v_bfe_u32 v4, v0, 2, 2
    v_lshlrev_b32 v5, 4, v2
    v_lshlrev_b32 v6, 2, v3
    v_add3_u32 v5, v5, v6, v4
    v_mul_u32_u24 v5, 160, v5
    s_mul_i32 s76, {S(sQ)}, 40
    s_add_u32 s76, s76, {L_UT}
    v_add_u32 v170, s76, v5
    s_lshl_b32 s76, {S(sQ)}, 11
    s_add_u32 s76, s76, {L_STG}
    v_xor_b32 v5, v2, v3
    v_lshlrev_b32 v5, 5, v5
    v_lshlrev_b32 v6, 7, v3
    v_lshlrev_b32 v7, 3, v4
    v_add3_u32 v5, v5, v6, v7
    v_add_u32 v171, s76, v5
    v_bfe_u32 v2, v0, 3, 2
    v_bfe_u32 v3, v0, 1, 2
    v_xor_b32 v3, v3, v2
    v_lshlrev_b32 v3, 5, v3
    v_and_b32 v4, 1, v0
    v_lshlrev_b32 v4, 4, v4
    v_lshlrev_b32 v5, 7, v2
    v_add3_u32 v3, v3, v4, v5
    v_lshrrev_b32 v4, 5, v0
    v_lshlrev_b32 v5, 9, v4
    v_add3_u32 v172, v3, v5, s76
    v_mul_u32_u24 v4, {WS_UT1}, v4
    v_mul_u32_u24 v2, {UTP}, v2
    v_and_b32 v3, 7, v0
    v_lshlrev_b32 v3, 4, v3
    v_add3_u32 v173, v4, v2, v3""")
    e(f"s_cmp_lg_u32 {S(sQ)}, 0\ns_cbranch_scc1 L_noflaginit\nv_mov_b32 v2, {L_FLAG}\nv_mov_b32 v3, 0\nds_write_b32 v2, v3\nL_noflaginit:")

def u_transpose():
    for k in range(5):
        for cp in range(2):
            e(f"ds_read_b64_tr_b16 {V(130+4*k+2*cp,2)}, v170 offset:{(1-cp)*160+8*k}")
    e(f"""s_mul_i32 s76, {S(sHG)}, 80
    s_mul_i32 s77, {S(sQ)}, 20
    s_add_u32 s76, s76, s77
    s_mul_i32 s76, s76, {UTP}
    s_lshl_b32 s77, {S(sRB)}, 7
    s_add_u32 s77, s77, s76
    s_add_u32 s77, s77, {WS_UT0+128}""")
    e("s_waitcnt lgkmcnt(0)")
    for k in range(5):
        b=(k&1)*1024
        e(f"ds_write_b64 v171, {V(130+4*k,2)} offset:{b}\nds_write_b64 v171, {V(132+4*k,2)} offset:{b+512}\nds_read_b128 {V(150+4*k,4)}, v172 offset:{b}")
    e(f"s_cmp_lg_u32 {S(sRB)}, 0\ns_cbranch_scc1 L_nozp")
    e(f"""v_cmp_le_u32 vcc, 20, v0
    v_subrev_u32 v3, 20, v0
    v_mov_b32 v4, {WS_UT1}
    v_cndmask_b32 v3, v0, v3, vcc
    v_cndmask_b32 v4, 0, v4, vcc
    v_mul_u32_u24 v3, {UTP}, v3
    v_add3_u32 v3, v3, v4, s76
    v_mov_b32 v4, 0
    v_mov_b32 v5, 0
    v_mov_b32 v6, 0
    v_mov_b32 v7, 0
    s_mov_b32 exec_lo, -1
    s_mov_b32 exec_hi, 0xff
    buffer_store_dwordx4 v[4:7], v3, {S(sWS,4)}, 0 offen offset:112 sc1
    s_mov_b32 exec_hi, -1
    L_nozp:""")
    for k in range(5):
        e(f"s_waitcnt lgkmcnt({4-k})\ns_add_u32 s78, s77, {4*k*UTP}\nbuffer_store_dwordx4 {V(150+4*k,4)}, v173, {S(sWS,4)}, s78 offen sc1")

def kv_addr():
    e(f"""s_lshr_b32 s76, {S(sQ)}, 1
    s_mul_i32 s76, s76, 25600
    s_and_b32 s77, {S(sQ)}, 1
    s_lshl_b32 s77, s77, 5
    s_add_u32 s76, s76, s77
    s_add_u32 s76, s76, {L_WK}
    v_lshrrev_b32 v2, 4, v0
    v_lshlrev_b32 v3, 3, v2
    v_bfe_u32 v4, v0, 2, 2
    v_add_u32 v3, v3, v4
    v_mul_u32_u24 v3, 40, v3
    v_and_b32 v4, 3, v0
    v_lshlrev_b32 v4, 3, v4
    v_add3_u32 v88, v3, v4, s76
    v_and_b32 v3, 7, v0
    v_lshlrev_b32 v4, 1, v3
    v_xor_b32 v4, v4, v2
    v_lshlrev_b32 v4, 4, v4
    v_lshlrev_b32 v3, 8, v3
    v_add_u32 v3, v3, v4
    v_add_u32 v89, {L_X8}, v3
    v_xor_b32 v90, 64, v89
    v_xor_b32 v91, 0x80, v89
    v_xor_b32 v92, 0xc0, v89""")
    e(f"""s_lshl_b32 s76, {S(sRB)}, 1
    s_lshr_b32 s77, {S(sHG)}, 2
    s_add_u32 s76, s76, s77
    s_mul_i32 s76, s76, {TILE}
    s_add_u32 s76, s76, {WS_KV}
    s_and_b32 s77, {S(sHG)}, 3
    v_and_b32 v3, 15, v0
    s_cmp_ge_u32 {S(sQ)}, 2
    s_cbranch_scc1 L_kva_v
    s_lshl_b32 s78, s77, 3
    v_add_u32 v3, s78, v3
    s_cmp_eq_u32 {S(sQ)}, 1
    s_cbranch_scc1 L_kva_k1
    v_and_b32 v4, 1, v2
    v_lshlrev_b32 v4, 5, v4
    v_add_u32 v3, v3, v4
    v_lshlrev_b32 v3, 4, v3
    v_lshrrev_b32 v4, 1, v2
    v_lshlrev_b32 v4, 3, v4
    v_add3_u32 v93, v3, v4, s76
    s_mov_b32 s80, 0x00ff00ff
    s_mov_b32 s81, 0x00ff00ff
    s_mov_b64 s[82:83], s[80:81]
    s_branch L_kva_done
    L_kva_k1:
    v_lshlrev_b32 v3, 3, v3
    s_add_u32 s76, s76, 3072
    v_add_u32 v93, s76, v3
    s_mov_b32 s80, 0xff
    s_mov_b32 s81, 0
    s_mov_b64 s[82:83], s[80:81]
    s_branch L_kva_done
    L_kva_v:
    s_and_b32 s78, {S(sQ)}, 1
    s_lshl_b32 s79, s78, 4
    v_add_u32 v3, s79, v3
    v_lshlrev_b32 v4, 5, v2
    v_add_u32 v3, v3, v4
    v_lshlrev_b32 v3, 4, v3
    s_lshr_b32 s79, s77, 1
    s_lshl_b32 s79, s79, 10
    s_add_u32 s76, s76, s79
    s_and_b32 s79, s77, 1
    s_lshl_b32 s79, s79, 3
    s_add_u32 s76, s76, s79
    s_add_u32 s76, s76, 1024
    v_add_u32 v93, s76, v3
    s_mov_b32 s80, -1
    s_mov_b32 s81, 0
    s_cmp_eq_u32 s78, 0
    s_cselect_b32 s82, -1, 0x000f000f
    s_mov_b32 s83, 0
    L_kva_done:""")
def kv_proj():
    def reads(setb, u0):
        for u in (u0,u0+1):
            b=setb+8*(u-u0)
            e(f"ds_read_b64_tr_b16 {V(b,2)}, v88 offset:{u*1280}\nds_read_b64_tr_b16 {V(b+2,2)}, v88 offset:{u*1280+160}\nds_read_b128 {V(b+4,4)}, {V(89+u)}")
    def mf(setb):
        for k in range(2):
            b=setb+8*k
            e(f"v_mfma_f32_16x16x32_bf16 v[48:51], {V(b,4)}, {V(b+4,4)}, v[48:51]\nv_mfma_f32_16x16x32_bf16 v[52:55], {V(b+4,4)}, {V(b,4)}, v[52:55]")
    for i in range(48,56): e(f"v_mov_b32 v{i}, 0")
    reads(56,0)
    e(f"s_mov_b32 s{sLoop}, 5\nL_kv:")
    body0=len(L)
    reads(72,2)
    e("v_add_u32 v88, 5120, v88")
    for u in range(4): e(f"v_add_u32 v{89+u}, 2048, v{89+u}")
    e("s_waitcnt lgkmcnt(6)"); mf(56)
    reads(56,0)
    e("s_waitcnt lgkmcnt(6)"); mf(72)
    e(f"s_sub_u32 s{sLoop}, s{sLoop}, 1\ns_cmp_lg_u32 s{sLoop}, 0\ns_cbranch_scc1 L_kv")
    LOOPS.append((body0,len(L)))
    e("s_waitcnt lgkmcnt(0)")
    e(f"s_cmp_lt_u32 {S(sQ)}, 2\ns_cbranch_scc1 L_kv_isk")
    nop(8)
    for i in range(4): e(f"v_mov_b32 v{48+i}, v{52+i}")
    e("L_kv_isk:"); nop(8)
    e("""v_cvt_pk_bf16_f32 v56, v48, v49
    v_cvt_pk_bf16_f32 v57, v50, v51
    v_mul_f32 v58, v48, v48
    v_fmac_f32 v58, v49, v49
    v_fmac_f32 v58, v50, v50
    v_fmac_f32 v58, v51, v51
    v_cndmask_b32 v58, 0, v58, s[82:83]""")
    e(f"""s_cmp_lg_u32 {S(sQ)}, 3
    s_cbranch_scc1 L_kv_nopad
    v_and_b32 v2, 15, v0
    v_cmp_eq_u32 vcc, 4, v2
    v_mov_b32 v3, 0x3f803f80
    s_nop 0
    v_cndmask_b32 v3, 0, v3, vcc
    v_cndmask_b32 v56, v3, v56, s[82:83]
    v_cndmask_b32 v57, v3, v57, s[82:83]
    L_kv_nopad:
    s_mov_b64 exec, s[80:81]
    buffer_store_dwordx2 v[56:57], v93, {S(sWS,4)}, 0 offen sc1
    s_mov_b64 exec, -1""")
    e("""v_mov_b32 v59, v58
    s_nop 1
    v_permlane32_swap_b32 v58, v59
    s_nop 1
    v_add_f32 v58, v58, v59
    v_mov_b32 v59, v58
    s_nop 1
    v_permlane16_swap_b32 v58, v59
    s_nop 1
    v_add_f32 v58, v58, v59""")
    for sh in (1,2,4,8):
        e(f"s_nop 1\nv_max_u32_dpp v58, v58, v58 row_ror:{sh} row_mask:0xf bank_mask:0xf")
    e(f"""s_lshl_b32 s76, s2, 4
    s_lshl_b32 s77, {S(sQ)}, 2
    s_add_u32 s76, s76, s77
    s_add_u32 s76, s76, {WS_ST}
    v_mov_b32 v2, 0
    s_mov_b64 exec, 1
    buffer_store_dword v58, v2, {S(sWS,4)}, s76 offen sc1
    s_cmp_lg_u32 {S(sQ)}, 1
    s_cbranch_scc1 L_noofr
    s_lshl_b32 s76, {S(sRB)}, 6
    s_lshl_b32 s77, {S(sHG)}, 2
    s_add_u32 s76, s76, s77
    s_add_u32 s76, s76, {WS_OF}
    buffer_store_dword v2, v2, {S(sWS,4)}, s76 offen sc1
    L_noofr:
    s_mov_b64 exec, -1""")
LOOPS=[]

def q_proj():
    accA,accB=48,64
    F=[80,92,104]
    def reads(st):
        b=F[st%3]
        return [f"ds_read_b128 {V(b,4)}, {V(vXA+st)}",
                f"ds_read_b64_tr_b16 {V(b+4,2)}, {V(vWA)} offset:{st*3072}",
                f"ds_read_b64_tr_b16 {V(b+6,2)}, {V(vWA)} offset:{st*3072+768}",
                f"ds_read_b64_tr_b16 {V(b+8,2)}, {V(vWA)} offset:{st*3072+40}",
                f"ds_read_b64_tr_b16 {V(b+10,2)}, {V(vWA)} offset:{st*3072+808}"]
    for i in range(32): e(f"v_mov_b32 v{accA+i}, 0")
    e(f"s_mov_b32 s{sLoop}, 0\ns_mov_b32 s{sBb}, {SLOT[2]}\ns_mov_b32 s79, 0")
    e("L_qp:")
    body0=len(L)
    e(f"s_cmp_ge_u32 s{sLoop}, 3\ns_cbranch_scc1 L_qp_nodma")
    chunk_scalars(sKC); chunk_next(sKC); slot_scalars(slot_reg=sBb)
    dl=chunk_dma_list(sSl)
    def compute(withdma):
        for x in reads(0)+reads(1): e(x)
        di=0
        for st in range(8):
            if st+2<8:
                for x in reads(st+2): e(x)
            n_after = 5*min(2,7-st)
            if withdma:
                e(dl[di][0])
            e(f"s_waitcnt lgkmcnt({n_after})")
            b=F[st%3]
            e(f"v_mfma_f32_32x32x16_bf16 {V(accA,16)}, {V(b+4,4)}, {V(b,4)}, {V(accA,16)}")
            if withdma:
                e(dl[di][1]); di+=1
                if st in (2,5): e(dl[di][0])
            e(f"v_mfma_f32_32x32x16_bf16 {V(accB,16)}, {V(b+8,4)}, {V(b,4)}, {V(accB,16)}")
            if withdma and st in (2,5): e(dl[di][1]); di+=1
        assert (not withdma) or di==10
    compute(True)
    stamp_dyn("qp_comp",5,sLoop)
    e("s_waitcnt vmcnt(10)\ns_branch L_qp_join\nL_qp_nodma:")
    compute(False)
    stamp_dyn("qp_comp",5,sLoop)
    e("s_waitcnt vmcnt(0)\nL_qp_join:")
    stamp_dyn("qp_waited",5,sLoop)
    e(f"""s_add_u32 s{sLoop}, s{sLoop}, 1
    s_cmp_eq_u32 s{sLoop}, 5
    s_cbranch_scc1 L_qp_end
    s_mov_b32 s{sBb}, s79
    s_add_u32 s78, s79, 40960
    s_cmp_eq_u32 s78, 122880
    s_cselect_b32 s78, 0, s78
    s_sub_u32 s77, s78, s79
    s_mov_b32 s79, s78""")
    for k in range(9): e(f"v_add_u32 {V(vXA+k)}, s77, {V(vXA+k)}")
    e("s_barrier\ns_branch L_qp")
    LOOPS.append((body0,len(L)))
    e("L_qp_end:")
    c=20**-0.5*math.log2(math.e)
    import struct
    cb=struct.unpack('<I',struct.pack('<f',c))[0]
    e(f"s_mov_b32 s76, {cb:#x}"); nop(12)
    for acc in (accA,accB):
        for i in range(12): e(f"v_mul_f32 v{acc+i}, s76, v{acc+i}")
    for acc,q1,q2,n in ((accA,Qa1,Qa2,2),(accB,Qb1,Qb2,3)):
        for i in range(4): e(f"v_cvt_pk_bf16_f32 v{q1+i}, v{acc+2*i}, v{acc+2*i+1}")
        for i in range(2): e(f"v_cvt_pk_bf16_f32 v{q2+i}, v{acc+8+2*i}, v{acc+9+2*i}")
        e(f"v_mul_f32 v{n}, v{acc}, v{acc}")
        for i in range(1,8): e(f"v_fmac_f32 v{n}, v{acc+i}, v{acc+i}")
        e(f"v_mul_f32 v{n+2}, v{acc+8}, v{acc+8}")
        for i in range(9,12): e(f"v_fmac_f32 v{n+2}, v{acc+i}, v{acc+i}")
    e(f"""v_cmp_gt_u32 vcc, 32, v0
    s_nop 1
    v_cndmask_b32 v4, 0, v4, vcc
    v_cndmask_b32 v5, 0, v5, vcc
    v_add_f32 v2, v2, v4
    v_add_f32 v3, v3, v5
    v_max_u32 {V(vN)}, v2, v3""")
    for q2 in (Qa2,Qb2):
        e(f"v_mov_b32 v6, v{q2}\nv_mov_b32 v7, v{q2+1}\ns_nop 1\nv_permlane32_swap_b32 v{q2}, v6\nv_permlane32_swap_b32 v{q2+1}, v7")
    e(f"""s_mul_i32 s76, {S(sQ)}, {QXP}
    s_add_u32 s76, s76, {L_QX}
    v_add_u32 v2, s76, {V(vL16)}
    ds_write_b128 v2, v[10:13]
    ds_write_b128 v2, v[14:17] offset:1024
    ds_write_b128 v2, v[18:21] offset:2048
    s_waitcnt lgkmcnt(0)""")

z1,z16,z256,z512,z768,z1024,cur,cu2,tmp=92,94,96,98,100,102,104,106,108
ZE=110; CV=124; vKGw,vKGr,a2,b2,vDT,Cp=128,129,130,131,132,134
def cmul(d,a,b):
    assert d!=a and d!=b
    e(f"v_pk_mul_f32 {V(d,2)}, {V(a,2)}, {V(b,2)} op_sel:[0,0] op_sel_hi:[1,0]")
    e(f"v_pk_fma_f32 {V(d,2)}, {V(a,2)}, {V(b,2)}, {V(d,2)} op_sel:[1,1,0] op_sel_hi:[0,1,1] neg_lo:[0,1,0]")
LOG2E=0x3fb8aa3b; INV2PI=0x3e22f983
def rne_bf16(dst,src):
    e(f"v_cvt_pk_bf16_f32 {V(dst)}, {V(src)}, {V(src)}\nv_and_b32 {V(dst)}, 0xffff0000, {V(dst)}")
def kgen_dt():
    e(f"""v_lshlrev_b32 v2, 16, {V(vLDT)}
    v_mul_f32 v2, {LOG2E:#x}, v2
    v_exp_f32 v2, v2
    s_nop 0""")
    rne_bf16(vDT,2)
    e(f"""s_mul_i32 s76, {S(sQ)}, {KGP}
    s_add_u32 s76, s76, {L_KG}
    v_lshlrev_b32 v2, 2, v0
    v_add_u32 {V(vKGw)}, s76, v2
    v_and_b32 v2, 15, v0
    v_mul_u32_u24 v2, 288, v2
    v_lshrrev_b32 v3, 4, v0
    v_lshlrev_b32 v3, 4, v3
    v_add3_u32 {V(vKGr)}, v2, v3, s76""")
    for i in range(48,60): e(f"v_mov_b32 v{i}, 0")
def kgen_setup():
    e(f"""v_and_b32 v2, 0xffff0000, {V(vLA)}
    v_and_b32 v3, 0xffff0000, {V(vAI)}
    v_and_b32 v4, 0xffff0000, {V(vCR)}
    v_and_b32 v5, 0xffff0000, {V(vCI)}
    v_mul_f32 v2, {LOG2E:#x}, v2
    v_exp_f32 v2, v2
    v_mul_f32 v3, v3, {V(vDT)}
    v_add_f32 v6, {V(vDT)}, {V(vDT)}""")
    rne_bf16(2,2)
    e(f"""v_mul_f32 {V(b2)}, {INV2PI:#x}, v3
    v_mul_f32 v2, v2, {V(vDT)}
    v_mul_f32 {V(Cp)}, v4, v6
    v_mul_f32 {V(a2)}, {LOG2E^0x80000000:#x}, v2
    v_mul_f32 {V(Cp+1)}, v5, v6""")
    for r in (vLA,vAI,vCR,vCI): e(f"v_lshlrev_b32 {V(r)}, 16, {V(r)}")
    for z,p in ((z1,1.0),(z16,16.0),(z256,256.0)):
        import struct
        pb=struct.unpack('<I',struct.pack('<f',p))[0]
        e(f"""v_mul_f32 v2, {pb:#x}, {V(a2)}
        v_mul_f32 v3, {pb:#x}, {V(b2)}
        v_exp_f32 v2, v2
        v_fract_f32 v3, v3
        v_cos_f32 v4, v3
        v_sin_f32 v5, v3
        s_nop 0
        v_mul_f32 {V(z)}, v2, v4
        v_mul_f32 {V(z+1)}, v2, v5""")
cvi=[0]
def put(row,z,neg=False):
    t=CV+(cvi[0]&3); cvi[0]+=1
    e(f"v_cvt_pk_bf16_f32 {V(t)}, {V(z)}, {'-' if neg else ''}{V(z+1)}\nds_write_b32 {V(vKGw)}, {V(t)} offset:{row*288}")
def put_const(row,val):
    t=CV+(cvi[0]&3); cvi[0]+=1
    e(f"v_mov_b32 {V(t)}, {val}\nds_write_b32 {V(vKGw)}, {V(t)} offset:{row*288}")
def tile_reads(dst):
    for s in range(4): e(f"ds_read_b128 {V(dst+4*s,4)}, {V(vKGr)} offset:{64*s}")
def tile_mf(D):
    for s in range(4):
        e(f"s_waitcnt lgkmcnt({3-s})\nv_mfma_f32_16x16x32_bf16 {V(D,4)}, {V(76+4*s,4)}, {V(60+4*s,4)}, {V(D,4)}")
def kgen_loop():
    e(f"s_mov_b32 s{sLoop}, 2\nL_kg:")
    body0=len(L)
    put(0,Cp,True); p=Cp
    for j in range(1,16):
        n=cur if (j&1) else cu2
        cmul(n,p,z16); put(j,n,True); p=n
    tile_reads(60)
    put_const(0,"0x3f80"); put(1,z1); p=z1
    for ee in range(2,16):
        n = ZE+(ee-2) if ee%2==0 else cur
        cmul(n,p,z1); put(ee,n); p=n
    tile_reads(76)
    cmul(z512,z256,z256)
    cmul(z768,z512,z256)
    cmul(z1024,z512,z512)
    tile_mf(48)
    stamp_dyn("kg_a",2,sLoop,2)
    e("s_barrier")
    stamp_dyn("kg_ab",2,sLoop,2)
    Z=lambda k: ZE+(k-2)
    put(0,z256)
    for k in range(1,8):
        n=cur if (k&1) else cu2
        cmul(n,z256,Z(2*k)); put(k,n)
    for base,z in ((8,z512),(12,z768)):
        put(base,z)
        for k in range(1,4):
            n=cur if (k&1) else cu2
            cmul(n,z,Z(4*k)); put(base+k,n)
    tile_reads(76)
    cmul(cur,z1024,Z(8))
    cmul(Cp,z1024,z512)
    cmul(cu2,z1024,z256)
    cmul(z1,z1024,z768)
    tile_mf(52)
    put(0,z1024); put(1,cur); put(2,cu2)
    cmul(tmp,cu2,Z(8)); put(3,tmp)
    cmul(cur,Cp,Z(8)); put(4,Cp); put(5,cur)
    cmul(cu2,z1,Z(8)); put(6,z1); put(7,cu2)
    cmul(tmp,z1,z16); put(8,tmp)
    tile_reads(76)
    kgen_setup()
    tile_mf(56)
    stamp_dyn("kg_b",2,sLoop,2)
    e(f"s_barrier\ns_sub_u32 s{sLoop}, s{sLoop}, 1\ns_cmp_lg_u32 s{sLoop}, 0\ns_cbranch_scc1 L_kg")
    LOOPS.append((body0,len(L)))
def kgen_finish():
    e(f"""s_mul_i32 s76, {S(sQ)}, {KGP}
    s_add_u32 s76, s76, {L_KG}
    v_and_b32 v2, 15, v0
    v_lshrrev_b32 v3, 4, v0
    v_cmp_gt_u32 vcc, 32, v0
    v_lshlrev_b32 v4, 4, v2
    v_lshlrev_b32 v5, 3, v3
    v_add_u32 v4, v4, v5
    v_lshlrev_b32 v5, 7, v3
    v_lshlrev_b32 v6, 3, v2
    v_add_u32 v5, v5, v6
    v_cndmask_b32 v4, v5, v4, vcc
    v_add_u32 v4, s76, v4
    v_lshlrev_b32 v5, 7, v3
    v_lshlrev_b32 v6, 2, v2
    v_add3_u32 v5, v5, v6, s76
    v_lshlrev_b32 v6, 16, {V(vD)}
    v_cmp_eq_u32 s[78:79], 0, v0
    v_lshlrev_b32 v8, 2, v0
    v_add_u32 v8, s76, v8
    v_cndmask_b32 v6, 0, v6, s[78:79]
    v_add_f32 v48, v48, v6
    v_cvt_pk_bf16_f32 v150, v51, v50
    v_cvt_pk_bf16_f32 v151, v49, v48
    v_cvt_pk_bf16_f32 v60, v52, v53
    v_cvt_pk_bf16_f32 v61, v54, v55
    v_cvt_pk_bf16_f32 v62, v56, v57
    v_cvt_pk_bf16_f32 v63, v58, v59
    ds_write_b64 v4, v[60:61]
    s_mov_b64 exec, vcc
    ds_write2_b32 v5, v62, v63 offset0:128 offset1:144
    s_mov_b32 exec_lo, 0
    s_mov_b32 exec_hi, 0x8000
    v_mov_b32 v7, s76
    ds_write_b32 v7, v62 offset:768
    s_mov_b64 exec, -1
    ds_read2_b32 v[144:145], v8 offset0:0 offset1:1
    ds_read2_b32 v[146:147], v8 offset0:64 offset1:65
    ds_read2_b32 v[148:149], v8 offset0:128 offset1:129""")
def lds_const_by_q(dst,vals):
    e(f"""s_mov_b32 s{dst}, {vals[0]}
    s_cmp_eq_u32 {S(sQ)}, 1
    s_cselect_b32 s{dst}, {vals[1]}, s{dst}
    s_cmp_eq_u32 {S(sQ)}, 2
    s_cselect_b32 s{dst}, {vals[2]}, s{dst}
    s_cmp_eq_u32 {S(sQ)}, 3
    s_cselect_b32 s{dst}, {vals[3]}, s{dst}""")
def poll_sync1():
    e(f"""v_lshlrev_b32 v2, 2, v0
    s_mov_b32 s{sSpin}, 0
    L_poll1:
    buffer_load_dword v3, v2, {S(sDBG,4)}, 0 offen sc1
    s_add_u32 s{sSpin}, s{sSpin}, 1
    s_cmp_gt_u32 s{sSpin}, 0x40000
    s_cbranch_scc1 L_poll1_done
    s_waitcnt vmcnt(0)
    v_cmp_gt_u32 vcc, 4, v3
    s_cbranch_vccnz L_poll1
    L_poll1_done:""")
def u_dma():
    lds_const_by_q(76,L_U)
    e(f"""s_lshl_b32 s77, {S(sCI)}, 2
    s_add_u32 s77, s77, {S(sQ)}
    s_mul_i32 s77, s77, {UTP}
    s_add_u32 s77, s77, 128""")
    for rho in range(4):
        src=(WS_UT1 if rho in (0,2) else WS_UT0)-(4 if rho<2 else 0)
        for i in range(4):
            e(f"s_add_u32 m0, s76, {rho*UCP+384+1024*i}\ns_add_u32 s78, s77, {src+1024*i}")
            dma(vL16,sWS,"s78",sc1=True)
    e(f"""v_mov_b32 v4, 0
    v_mov_b32 v5, 0
    v_mov_b32 v6, 0
    v_mov_b32 v7, 0
    v_add_u32 v2, s76, {V(vL16)}
    s_mov_b32 exec_hi, 0
    s_mov_b32 exec_lo, 0xffffff""")
    for rho in range(4): e(f"ds_write_b128 v2, v[4:7] offset:{rho*UCP}")
    e("s_mov_b64 exec, -1")
def expand_R():
    lds_const_by_q(76,L_R)
    e(f"""s_mov_b32 s77, 0x01000100
    s_mov_b32 s78, 0x03020302
    s_mov_b32 s79, 0x03020504
    s_mov_b32 s80, 0x05040504
    s_mov_b32 s81, 0x01000302
    v_and_b32 v2, 15, v0
    v_lshlrev_b32 v2, 5, v2
    v_lshrrev_b32 v3, 4, v0
    v_lshlrev_b32 v3, 3, v3
    v_add_u32 v2, v2, v3
    s_add_u32 s82, s76, 4088
    v_sub_u32 v2, s82, v2
    v_lshlrev_b32 v3, 3, v0
    s_add_u32 s82, s76, 4088-512
    v_sub_u32 v3, s82, v3
    s_add_u32 s82, s76, 3056
    v_sub_u32 v4, s82, {V(vL16)}
    v_lshlrev_b32 v5, 5, v0
    s_add_u32 s82, s76, 2016
    v_sub_u32 v5, s82, v5
    v_perm_b32 v152, v145, v144, s79
    v_perm_b32 v153, v144, v144, s77
    v_perm_b32 v156, v147, v147, s77
    v_perm_b32 v157, v146, v146, s78
    v_perm_b32 v158, v146, v146, s81
    v_perm_b32 v159, v146, v146, s77
    v_perm_b32 v160, v149, v149, s77
    v_perm_b32 v161, v149, v149, s77
    v_perm_b32 v162, v148, v148, s78
    v_perm_b32 v163, v148, v148, s78
    v_perm_b32 v164, v148, v148, s78
    v_perm_b32 v165, v148, v148, s81
    v_perm_b32 v166, v148, v148, s77
    v_perm_b32 v167, v148, v148, s77
    ds_write_b64 v2, v[150:151]
    ds_write_b64 v2, v[150:151] offset:{RCP-8}
    ds_write_b64 v3, v[152:153]
    ds_write_b64 v3, v[152:153] offset:{RCP-8}
    ds_write_b128 v4, v[156:159]
    ds_write_b64 v4, v[156:157] offset:{RCP-8}
    ds_write_b64 v4, v[158:159] offset:{RCP}
    ds_write_b128 v5, v[160:163]
    ds_write_b128 v5, v[164:167] offset:16
    ds_write_b64 v5, v[160:161] offset:{RCP-8}
    ds_write_b64 v5, v[162:163] offset:{RCP}
    ds_write_b64 v5, v[164:165] offset:{RCP+8}
    ds_write_b64 v5, v[166:167] offset:{RCP+16}
    v_mov_b32 v6, 0
    v_mov_b32 v7, 0
    v_lshlrev_b32 v2, 3, v0
    v_add_u32 v2, s76, v2
    s_mov_b32 exec_hi, 0
    s_mov_b32 exec_lo, 0x7fff
    ds_write_b64 v2, v[6:7] offset:4096
    s_mov_b32 exec_lo, 0xffff
    ds_write_b64 v2, v[6:7] offset:{RCP+4088}
    s_mov_b64 exec, -1""")
def conv():
    acc=48; U=[80,144]; K=[112,176]; vUa,vKa=208,209
    lds_const_by_q(77,L_U)
    e(f"""v_and_b32 v2, 3, v0
    v_mul_u32_u24 v2, {UCP}, v2
    v_bfe_u32 v3, v0, 2, 2
    v_lshlrev_b32 v3, 7, v3
    v_lshrrev_b32 v4, 4, v0
    v_lshlrev_b32 v4, 4, v4
    v_add3_u32 v2, v2, v3, v4
    s_add_u32 s78, s77, 448
    v_add_u32 {V(vUa)}, s78, v2
    v_and_b32 v2, 15, v0
    v_lshlrev_b32 v2, 3, v2
    v_sub_u32 v2, v4, v2
    v_and_b32 v3, 1, v0
    v_mul_u32_u24 v3, {RCP-8}, v3
    v_sub_u32 v2, v2, v3
    s_add_u32 s78, s76, {4152-3584+RCP-8}
    v_add_u32 {V(vKa)}, s78, v2""")
    for i in range(32): e(f"v_mov_b32 v{acc+i}, 0")
    e("s_waitcnt vmcnt(0) lgkmcnt(0)")
    stamp("u_landed")
    def rd(s):
        r=[]
        for m in range(8):
            r.append(f"ds_read_b128 {V(K[s]+4*m,4)}, {V(vKa)} offset:{512*(7-m)}")
            r.append(f"ds_read_b128 {V(U[s]+4*m,4)}, {V(vUa)} offset:{512*m}")
        r.append(f"v_add_u32 {V(vKa)}, -64, {V(vKa)}\nv_add_u32 {V(vUa)}, -64, {V(vUa)}")
        return r
    for x in rd(0): e(x)
    e(f"s_mov_b32 s{sLoop}, 4\nL_cv:")
    body0=len(L)
    for s in range(2):
        nx=rd(1-s)
        order=sorted([(ii,m) for ii in range(8) for m in range(8-ii)], key=lambda p:(max(p),p))
        waited=-1; k=0
        e("s_waitcnt lgkmcnt(0)")
        for n,(ii,m) in enumerate(order):
            e(f"v_mfma_f32_16x16x32_bf16 {V(acc+4*(ii+m),4)}, {V(U[s]+4*m,4)}, {V(K[s]+4*ii,4)}, {V(acc+4*(ii+m),4)}")
            if k<len(nx): e(nx[k]); k+=1
        assert k==len(nx)
    e(f"s_sub_u32 s{sLoop}, s{sLoop}, 1\ns_cmp_lg_u32 s{sLoop}, 0\ns_cbranch_scc1 L_cv")
    LOOPS.append((body0,len(L)))
    lds_const_by_q(76,L_YS)
    e(f"""v_lshrrev_b32 v2, 4, v0
    v_lshlrev_b32 v2, 7, v2
    v_and_b32 v3, 15, v0
    v_lshlrev_b32 v3, 3, v3
    v_add3_u32 v2, v2, v3, s76
    s_waitcnt lgkmcnt(0)""")
    for c in range(8):
        e(f"v_cvt_pk_bf16_f32 v{80+2*c}, v{acc+4*c}, v{acc+4*c+1}\nv_cvt_pk_bf16_f32 v{81+2*c}, v{acc+4*c+2}, v{acc+4*c+3}")
    for c in range(8): e(f"ds_write_b64 v2, {V(80+2*c,2)} offset:{512*c}")

def kv_stage_dma_list(stage, slotvals, n=7):
    out=[]
    for m in range(n):
        pre=f"s_add_u32 s84, {S(sQ)}, {4*m}"
        if 4*m+3>25: pre+=f"\ns_min_u32 s84, s84, 25"
        pre+=f"\ns_lshl_b32 s84, s84, 10\ns_add_u32 m0, s84, s89\ns_add_u32 s84, s84, s88"
        out.append((pre, f"buffer_load_dwordx4 {V(vL16)}, {S(sWS,4)}, s84 offen sc1 lds"))
    return out
def kv_stage_scalars(stage, slotvals, half=None):
    if half is None:
        e(f"s_mul_i32 s88, {S(sB)}, {32*TILE}\ns_add_u32 s88, s88, {WS_KV+stage*8*TILE}\n"+selb(89,slotvals))
    else:
        e(f"s_mov_b32 s88, {WS_KV+half*32*TILE+stage*8*TILE}\ns_mov_b32 s89, {slotvals[half]}")

def stats_check():
    for i in range(4): e(f"s_mov_b32 s76, {WS_ST+1024*i}\nbuffer_load_dwordx4 {V(48+4*i,4)}, {V(vL16)}, {S(sWS,4)}, s76 offen sc1")
    e("s_waitcnt vmcnt(0)")
    e("v_max_u32 v48, v48, v52\nv_max_u32 v56, v56, v60\nv_max_u32 v49, v49, v53\nv_max_u32 v57, v57, v61")
    e("v_max3_u32 v50, v50, v51, v54\nv_max3_u32 v58, v58, v59, v55\nv_max3_u32 v50, v50, v62, v63")
    e("v_max_u32 v48, v48, v56\nv_max_u32 v49, v49, v57\nv_max_u32 v50, v50, v58")
    for sh in (1,2,4,8):
        e("s_nop 0")
        for r in (48,49,50): e(f"v_max_u32_dpp v{r}, v{r}, v{r} row_ror:{sh} row_mask:0xf bank_mask:0xf")
    for op in ("v_permlane16_swap_b32","v_permlane32_swap_b32"):
        e("v_mov_b32 v52, v48\nv_mov_b32 v53, v49\nv_mov_b32 v54, v50\ns_nop 1")
        e(f"{op} v48, v52\n{op} v49, v53\n{op} v50, v54\ns_nop 1")
        e("v_max_u32 v48, v48, v52\nv_max_u32 v49, v49, v53\nv_max_u32 v50, v50, v54")
    thr = 1e-30 if OPT['force_fb'] else 48.0*48.0/2.2
    import struct
    tb=struct.unpack('<I',struct.pack('<f',thr))[0]
    e(f"""v_add_f32 v48, v48, v49
    v_mul_f32 v48, v48, {V(vN)}
    s_mov_b32 s76, {tb:#x}
    s_mov_b32 s77, 0x67800000
    v_cmp_nle_f32 vcc, v48, s76
    v_cmp_nle_f32 s[78:79], v50, s77
    s_nop 1
    s_or_b64 vcc, vcc, s[78:79]
    s_cbranch_vccz L_nofb
    v_mov_b32 v2, {L_FLAG}
    v_mov_b32 v3, 1
    ds_write_b32 v2, v3
    L_nofb:""")

SA,SB,PA,PB,OA,OB,K1,K2,VV=48,80,112,128,144,160,176,184,188
NA,NB=204,220
PAIR=2*TILE
def valu_half(Sv,Pv):
    ex=[f"v_exp_f32 v{Sv+i}, v{Sv+i}" for i in range(16)]
    c=[f"v_cvt_pk_bf16_f32 v{Pv+i}, v{Sv+2*i}, v{Sv+2*i+1}" for i in range(8)]
    return [ex[0],ex[1],ex[2],ex[3],ex[4],ex[5],c[0],ex[6],ex[7],c[1],ex[8],ex[9],c[2],ex[10],ex[11],c[3],ex[12],ex[13],c[4],ex[14],ex[15],c[5],c[6],c[7]]
def qk(Sm,q1,q2,C=None):
    c0="0" if C is None else V(C,16)
    return [f"v_mfma_f32_32x32x16_bf16 {V(Sm,16)}, {V(K1,4)}, {V(q1,4)}, {c0}",
            f"v_mfma_f32_32x32x16_bf16 {V(Sm+16,16)}, {V(K1+4,4)}, {V(q1,4)}, {c0}",
            f"v_mfma_f32_32x32x4bf16_1k {V(Sm,32)}, {V(K2,2)}, {V(q2,2)}, {V(Sm,32)}"]
def pv(Om,Pm,first=False):
    return [f"v_mfma_f32_32x32x16_bf16 {V(Om,16)}, {V(VV+4*i,4)}, {V(Pm+4*i,4)}, {'0' if (first and i==0) else V(Om,16)}" for i in range(4)]
def kreads(t):
    sl=(t>>2)%3; o=(t&3)*PAIR
    return [f"ds_read_b128 {V(K1,4)}, {V(vKV[sl])} offset:{o}", f"ds_read_b128 {V(K1+4,4)}, {V(vKV[sl])} offset:{o+TILE}", f"ds_read_b64 {V(K2,2)}, {V(vK2[sl])} offset:{o}"]
def vreads(t):
    sl=(t>>2)%3; o=(t&3)*PAIR
    return [f"ds_read_b128 {V(VV+4*i,4)}, {V(vKV[sl])} offset:{o+(i>>1)*TILE+1024+(i&1)*1024}" for i in range(4)]
POS=(0,4,14,22,28,34,40)
def phase(Sv,Pv,mf,after,pre=None):
    v=valu_half(Sv,Pv)+valu_half(Sv+16,Pv+8)
    for i in range(len(v)):
        for k,p in enumerate(POS):
            if p==i:
                if pre and pre.get(k): e(pre[k])
                if mf[k]: e(mf[k])
                for x in after.get(k,[]): e(x)
        e(v[i])
def wo_dma_list(first_quarter, slotvals):
    out=[]
    for m in range(7):
        pre=f"s_add_u32 s84, {S(sQ)}, {4*m}"
        if 4*m+3>26: pre+="\ns_min_u32 s84, s84, 26"
        pre+=f"\ns_mul_i32 s85, s84, 960\ns_add_u32 m0, s85, s89\ns_mul_i32 s84, s84, 7680\ns_add_u32 s84, s84, s88"
        out.append((pre, f"s_mov_b32 exec_hi, 0x0fffffff\nbuffer_load_dwordx4 {V(vP10)}, {S(sWO,4)}, s84 offen lds\ns_mov_b32 exec_hi, -1"))
    return out
def wo_scalars(first_quarter, slotvals):
    e(f"""s_add_u32 s88, {S(sB)}, {first_quarter}
    s_mul_i32 s88, s88, {160*1280}
    s_mul_i32 s89, {S(sHG)}, 160
    s_add_u32 s88, s88, s89""")
    e(selb(89,slotvals))
def attention():
    for x in kreads(0): e(x)
    e("s_waitcnt lgkmcnt(0)")
    m=qk(SA,Qa1,Qa2); e(m[0]); e(m[1]); nop(10); e(m[2]); nop(20)
    stamp("attn_start")
    extra={}
    def sched(items,t0):
        for k,it in enumerate(items): extra.setdefault(t0+k//2,[]).append(it)
    for t in range(16):
        mf=qk(SB,Qb1,Qb2)+(pv(OB,PB,t==1) if t>=1 else [None]*4)
        after={}
        if t<15:
            kr=kreads(t+1)
            for k in range(3): after[k]=[kr[k]]
        vr=vreads(t)
        for k in range(4): after[3+k]=[vr[k]]
        if t in (3,7,11):
            cnt={3:6,7:4,11:0}[t]
            after[0]=[f"s_waitcnt vmcnt({cnt})","s_barrier"]+after[0]
        pre={}
        if t==0:
            pre[0]="s_setprio 1"
        else: pre[0]="s_setprio 1"
        phase(SA,PA,mf,after,pre)
        if t==0: kv_stage_scalars(2,L_Z); sched(kv_stage_dma_list(2,L_Z),0)
        if t==4: sched([(f"s_mov_b32 s84, {i*64*2560}", f"buffer_store_dwordx2 {V(vY+2*i,2)}, {V(vYst)}, {S(sOUT,4)}, s84 offen") for i in range(4)],4)
        if t==7: kv_stage_scalars(3,L_X); sched(kv_stage_dma_list(3,L_X),7)
        if t==11: wo_scalars(0,L_Y); sched(wo_dma_list(0,L_Y),11)
        mf=(qk(SA,Qa1,Qa2) if t<15 else [None]*3)+pv(OA,PA,t==0)
        after={}; pre={}
        pre[0]="s_setprio 0\n"+("s_waitcnt lgkmcnt(4)" if t<15 else "")
        pre[3]="s_waitcnt lgkmcnt(0)"
        ex=extra.get(t,[])
        for k,(p,d) in enumerate(ex):
            if k==0: pre[0]=p+"\n"+pre[0]; after[0]=[d]
            else: after.setdefault(0,[]).append(p); after[1]=[d]
        phase(SB,PB,mf,after,pre)
    nop(2)
    for x in pv(OB,PB): e(x)
    e("s_setprio 0")

def fallback():
    e(f"""s_mul_i32 s88, {S(sB)}, {32*TILE}
    s_add_u32 s88, s88, {WS_KV}
    v_lshrrev_b32 v2, 5, v0
    v_mul_u32_u24 v2, {TILE}, v2
    v_and_b32 v3, 31, v0
    v_lshlrev_b32 v3, 3, v3
    v_add3_u32 v4, v2, v3, 0
    v_mov_b32 v6, 0xff800000
    v_mov_b32 v7, 0xff800000""")
    for i in range(4): e(f"s_mov_b32 s84, {i*64*2560}\nbuffer_store_dwordx2 {V(vY+2*i,2)}, {V(vYst)}, {S(sOUT,4)}, s84 offen")
    def kload():
        e(f"""buffer_load_dwordx4 {V(K1,4)}, {V(vL16)}, {S(sWS,4)}, s84 offen sc1
        buffer_load_dwordx4 {V(K1+4,4)}, {V(vL16)}, {S(sWS,4)}, s84 offen offset:{TILE} sc1
        buffer_load_dwordx2 {V(K2,2)}, v4, {S(sWS,4)}, s84 offen offset:3072 sc1""")
    e(f"s_mov_b32 s84, s88\ns_mov_b32 s{sLoop}, 16\nL_fb1:")
    kload(); e("s_waitcnt vmcnt(0)")
    for Sm,q1,q2 in ((SA,Qa1,Qa2),(SB,Qb1,Qb2)):
        m=qk(Sm,q1,q2); e(m[0]); e(m[1]); nop(10); e(m[2])
    nop(20)
    for Sm,r in ((SA,6),(SB,7)):
        for i in range(16): e(f"v_max3_f32 v{r}, v{r}, v{Sm+2*i}, v{Sm+2*i+1}")
    e(f"s_add_u32 s84, s84, {PAIR}\ns_sub_u32 s{sLoop}, s{sLoop}, 1\ns_cmp_lg_u32 s{sLoop}, 0\ns_cbranch_scc1 L_fb1")
    for r in (6,7):
        e(f"v_mov_b32 v5, v{r}\ns_nop 1\nv_permlane32_swap_b32 v{r}, v5\ns_nop 1\nv_max_f32 v{r}, v{r}, v5")
    e(f"""s_lshl_b32 s76, {S(sWv)}, 9
    v_lshlrev_b32 v2, 3, v0
    v_add_u32 v3, s76, v2
    ds_write_b64 v3, v[6:7] offset:0
    s_xor_b32 s76, s76, 2048
    v_add_u32 v3, s76, v2
    s_waitcnt lgkmcnt(0)
    s_barrier
    ds_read_b64 v[8:9], v3
    s_waitcnt lgkmcnt(0)
    v_max_f32 v6, v6, v8
    v_max_f32 v7, v7, v9""")
    for i in range(16): e(f"v_sub_f32 v{NA+i}, 0, v6\nv_sub_f32 v{NB+i}, 0, v7\nv_mov_b32 v{OA+i}, 0\nv_mov_b32 v{OB+i}, 0")
    e(f"s_mov_b32 s84, s88\ns_mov_b32 s{sLoop}, 16\nL_fb2:")
    kload()
    e(f"s_add_u32 s85, s84, 1024")
    for i in range(4): e(f"buffer_load_dwordx4 {V(VV+4*i,4)}, {V(vL16)}, {S(sWS,4)}, s85 offen offset:{(i&1)*1024} sc1" + ("\ns_add_u32 s85, s85, %d"%TILE if i==1 else ""))
    e("s_waitcnt vmcnt(0)")
    for Sm,q1,q2,N in ((SA,Qa1,Qa2,NA),(SB,Qb1,Qb2,NB)):
        m=qk(Sm,q1,q2,N); e(m[0]); e(m[1]); nop(10); e(m[2])
    nop(20)
    for Sm,Pm,Om in ((SA,PA,OA),(SB,PB,OB)):
        for x in valu_half(Sm,Pm)+valu_half(Sm+16,Pm+8): e(x)
        nop(2)
        for x in pv(Om,Pm): e(x)
    e(f"s_add_u32 s84, s84, {PAIR}\ns_sub_u32 s{sLoop}, s{sLoop}, 1\ns_cmp_lg_u32 s{sLoop}, 0\ns_cbranch_scc1 L_fb2")
    e("s_barrier")
    wo_scalars(0,L_Y)
    for p,d in wo_dma_list(0,L_Y): e(p); e(d)

def tail():
    EX=L_X[0]
    srd(sOUT,28,5242880)
    e(f"s_cmp_eq_u32 {S(sB)}, 0\ns_cbranch_scc1 L_noswap"); nop(12)
    for i in range(12): e(f"v_swap_b32 v{OA+i}, v{OB+i}")
    e("L_noswap:")
    e(f"""s_mul_i32 s76, {S(sWv)}, 3072
    s_add_u32 s76, s76, {EX}
    v_add_u32 v2, s76, {V(vL16)}
    s_xor_b32 s77, {S(sWv)}, 4
    s_mul_i32 s77, s77, 3072
    s_add_u32 s77, s77, {EX}
    v_add_u32 v3, s77, {V(vL16)}"""); nop(8)
    e("s_barrier")
    stamp("f1")
    for i in range(3): e(f"ds_write_b128 v2, {V(OB+4*i,4)} offset:{1024*i}")
    e("s_waitcnt lgkmcnt(0)\ns_barrier")
    for i in range(3): e(f"ds_read_b128 {V(48+4*i,4)}, v3 offset:{1024*i}")
    wo_scalars(2,L_Z)
    e("s_waitcnt lgkmcnt(0)")
    e(f"v_add_f32 v{OA+8}, v{OA+8}, v56")
    for i in list(range(8))+[9,10,11]: e(f"v_add_f32 v{OA+i}, v{OA+i}, v{48+i}")
    e(f"v_mov_b32 v4, v{OA+8}\nv_mov_b32 v5, v{OA+8}\ns_nop 1\nv_permlane32_swap_b32 v4, v5\ns_nop 1\nv_rcp_f32 v5, v5\ns_nop 0")
    for i in range(12): e(f"v_mul_f32 v{OA+i}, v{OA+i}, v5")
    for i in range(6): e(f"v_cvt_pk_bf16_f32 v{48+i}, v{OA+2*i}, v{OA+2*i+1}")
    for i,a in enumerate((vOA0,vOA1,vOA2)): e(f"buffer_store_dwordx2 {V(48+2*i,2)}, {V(a)}, {S(sWS,4)}, 0 offen sc1")
    stamp("o_issue")
    for p,d in wo_dma_list(2,L_Z): e(p); e(d)
    stamp("o_stored")
    e("s_waitcnt vmcnt(7)\ns_barrier")
    stamp("o_acked")
    e(f"""s_cmp_lg_u32 {S(sWv)}, 0
    s_cbranch_scc1 L_noflag
    s_lshl_b32 s76, {S(sRB)}, 6
    s_lshl_b32 s77, {S(sHG)}, 2
    s_add_u32 s76, s76, s77
    s_add_u32 s76, s76, {WS_OF}
    v_mov_b32 v2, 0
    v_mov_b32 v3, 1
    s_mov_b64 exec, 1
    buffer_store_dword v3, v2, {S(sWS,4)}, s76 offen sc1
    s_mov_b64 exec, -1
    L_noflag:""")
    WA,WB,vOl,vOs,vOr,vOg,vFl=10,11,12,13,14,15,16
    e(selb(76,(L_Y[0],L_Z[0]))); e(selb(77,(L_Y[1],L_Z[1])))
    e(f"""    v_lshrrev_b32 v2, 5, v0
    v_lshlrev_b32 v2, 4, v2
    v_bfe_u32 v3, v0, 4, 1
    v_lshlrev_b32 v3, 2, v3
    v_bfe_u32 v4, v0, 2, 2
    v_add3_u32 v2, v2, v3, v4
    v_mul_u32_u24 v2, 160, v2
    v_and_b32 v3, 3, v0
    v_lshlrev_b32 v3, 3, v3
    v_add3_u32 {V(WA)}, v2, v3, s76
    v_add3_u32 {V(WB)}, v2, v3, s77
    s_mul_i32 s76, {S(sRB)}, 81920
    s_mul_i32 s77, {S(sQ)}, 20480
    s_add_u32 s76, s76, s77
    s_mul_i32 s77, {S(sB)}, 10240
    s_add_u32 s76, s76, s77
    s_add_u32 s76, s76, {WS_O}
    v_add_u32 {V(vOl)}, s76, {V(vL16)}
    s_lshl_b32 s76, {S(sQ)}, 4
    v_and_b32 v2, 15, v0
    v_add_u32 v2, s76, v2
    v_mul_u32_u24 v2, 160, v2
    v_lshrrev_b32 v3, 4, v0
    v_lshlrev_b32 v3, 3, v3
    v_add_u32 v2, v2, v3
    v_add_u32 {V(vOs)}, {L_X[1]}, v2
    s_mul_i32 s76, {S(sWv)}, 960
    s_add_u32 s76, s76, {L_X[1]}
    v_add_u32 {V(vOr)}, s76, {V(vL16)}""")
    div10(2,0)
    e(f"""v_mul_u32_u24 v3, 1280, v2
    v_add_u32 {V(vOg)}, {V(vP10)}, v3
    v_and_b32 v2, 7, v0
    v_lshlrev_b32 {V(vFl)}, 2, v2
    s_waitcnt vmcnt(0)
    s_barrier""")
    stamp("wo_landed")
    WF=64; OF=20; ACC=204
    def wr(sp,slot):
        base=WA if sp<5 else WB; o=(sp%5)*5120
        r=[]
        for ct in range(5):
            b=WF+20*slot+4*ct
            r+= [f"ds_read_b64_tr_b16 {V(b,2)}, {V(base)} offset:{o+32*ct}", f"ds_read_b64_tr_b16 {V(b+2,2)}, {V(base)} offset:{o+32*ct+1280}"]
        return r
    for sp in range(7):
        for x in wr(sp,sp): e(x)
    stamp("pre_poll")
    e(f"""s_lshl_b32 s76, {S(sRB)}, 6
    s_add_u32 s76, s76, {WS_OF}
    s_mov_b32 s{sSpin}, 0
    L_poll2:
    buffer_load_dword v3, {V(vFl)}, {S(sWS,4)}, s76 offen sc1
    s_add_u32 s{sSpin}, s{sSpin}, 1
    s_cmp_gt_u32 s{sSpin}, 0x40000
    s_cbranch_scc1 L_poll2_done
    s_waitcnt vmcnt(0)
    v_cmp_ne_u32 vcc, 1, v3
    s_cbranch_vccnz L_poll2
    L_poll2_done:""")
    stamp("polled")
    for sp in range(10):
        if sp==4: e(f"v_add_u32 {V(vOl)}, 4096, {V(vOl)}")
        if sp==8: e(f"v_add_u32 {V(vOl)}, 4096, {V(vOl)}")
        e(f"buffer_load_dwordx4 {V(OF+4*sp,4)}, {V(vOl)}, {S(sWS,4)}, 0 offen offset:{1024*(sp%4)} sc1")
    for sp in range(10):
        slot=sp%7
        w=f"s_waitcnt vmcnt({9-sp})"
        if sp==0: w+=" lgkmcnt(0)"
        if sp==7: w+=" lgkmcnt(10)"
        if sp==8: w+=" lgkmcnt(10)"
        if sp==9: w+=" lgkmcnt(0)"
        e(w)
        for ct in range(5):
            e(f"v_mfma_f32_16x16x32_bf16 {V(ACC+4*ct,4)}, {V(WF+20*slot+4*ct,4)}, {V(OF+4*sp,4)}, {'0' if sp==0 else V(ACC+4*ct,4)}")
        if sp<3:
            for x in wr(sp+7,slot): e(x)
    stamp("oproj_done")
    EX2=L_X[0]
    e(f"""s_mul_i32 s76, {S(sWv)}, 3072
    s_add_u32 s76, s76, {EX2}
    v_add_u32 v2, s76, {V(vL16)}
    s_xor_b32 s77, {S(sWv)}, 4
    s_mul_i32 s77, s77, 3072
    s_add_u32 s77, s77, {EX2}
    v_add_u32 v3, s77, {V(vL16)}
    s_cmp_eq_u32 {S(sB)}, 0
    s_cbranch_scc0 L_red_b"""); nop(8)
    def red(send,keep,lab):
        for i,ct in enumerate(send): e(f"ds_write_b128 v2, {V(ACC+4*ct,4)} offset:{1024*i}")
        e("s_waitcnt lgkmcnt(0)\ns_barrier")
        for i,ct in enumerate(keep): e(f"ds_read_b128 {V(48+4*i,4)}, v3 offset:{1024*i}")
        for i,ct in enumerate(keep):
            e(f"s_waitcnt lgkmcnt({len(keep)-1-i})")
            for r in range(4): e(f"v_add_f32 v{ACC+4*ct+r}, v{ACC+4*ct+r}, v{48+4*i+r}")
            e(f"v_cvt_pk_bf16_f32 v{64+2*i}, v{ACC+4*ct}, v{ACC+4*ct+1}\nv_cvt_pk_bf16_f32 v{65+2*i}, v{ACC+4*ct+2}, v{ACC+4*ct+3}")
            e(f"ds_write_b64 {V(vOs)}, {V(64+2*i,2)} offset:{32*ct}")
    red((3,4),(0,1,2),'a'); e("s_branch L_red_j\nL_red_b:"); nop(8)
    red((0,1,2),(3,4),'b'); e("L_red_j:")
    e(f"""s_lshl_b32 s76, {S(sRB)}, 6
    s_mul_i32 s77, {S(sWv)}, 6
    s_add_u32 s76, s76, s77
    s_mul_i32 s76, s76, 2560
    s_mul_i32 s77, {S(sHG)}, 160
    s_add_u32 s76, s76, s77
    s_add_u32 s77, s76, {48*2560}
    s_waitcnt lgkmcnt(0)
    s_barrier
    ds_read_b128 v[48:51], {V(vOr)}
    ds_read_b128 v[52:55], {V(vOr)} offset:{8*960}
    s_mov_b32 exec_hi, 0x0fffffff
    s_waitcnt lgkmcnt(1)
    buffer_store_dwordx4 v[48:51], {V(vOg)}, {S(sOUT,4)}, s76 offen
    s_cmp_ge_u32 {S(sWv)}, 3
    s_cbranch_scc1 {'L_fin' if OPT['stamp'] else 'L_exit'}
    s_cmp_eq_u32 {S(sWv)}, 2
    s_cselect_b32 exec_hi, 0xff, exec_hi
    s_waitcnt lgkmcnt(0)
    buffer_store_dwordx4 v[52:55], {V(vOg)}, {S(sOUT,4)}, s77 offen""")

def main():
    entry()
    if OPT['stamp']: e("v_mov_b32 v253, 0")
    stamp("issued0")
    e(f"s_cmp_eq_u32 {S(sB)}, 0\ns_cbranch_scc0 L_B0")
    q_wave_prologue()
    common_addr()
    srd(sWO,12,819200); srd(sOUT,28,5242880)
    e("s_waitcnt vmcnt(10)\ns_barrier")
    stamp("beta_a")
    u_transpose()
    chunk_scalars(sKC); chunk_next(sKC); slot_scalars(SLOT[1])
    for pre,d in chunk_dma_list(sSl): e(pre); e(d)
    e("s_waitcnt vmcnt(10)\ns_barrier")
    stamp("beta_b")
    q_proj()
    stamp("qproj_done")
    e("s_barrier\ns_barrier")
    for half in range(2):
        kv_stage_scalars(0,L_X,half)
        for p,d in kv_stage_dma_list(0,L_X): e(p); e(d)
    stats_check()
    e("s_waitcnt vmcnt(0) lgkmcnt(0)")
    e("s_branch L_J1")
    e("L_B0:")
    kv_addr()
    common_addr()
    srd(sWO,12,819200); srd(sOUT,28,5242880); srd(sDBG,30,256)
    e("s_waitcnt vmcnt(0)\ns_barrier")
    stamp("beta_a")
    kv_proj()
    stamp("kv_done")
    e(f"s_cmp_eq_u32 {S(sConv)}, 0\ns_cbranch_scc1 L_B_nosetup")
    kgen_dt(); kgen_setup()
    e("L_B_nosetup:\ns_waitcnt vmcnt(0)\ns_barrier")
    stamp("beta_b")
    e(f"""s_cmp_lg_u32 {S(sQ)}, 0
    s_cbranch_scc1 L_nosig
    s_and_b32 s76, s2, 63
    s_lshl_b32 s76, s76, 2
    v_mov_b32 v2, 0
    v_mov_b32 v3, 1
    s_mov_b64 exec, 1
    buffer_atomic_add v3, v2, {S(sDBG,4)}, s76 offen sc1
    s_mov_b64 exec, -1
    L_nosig:""")
    e(f"s_cmp_eq_u32 {S(sConv)}, 0\ns_cbranch_scc0 L_B_conv")
    e("s_barrier\ns_barrier\ns_barrier\ns_barrier")
    poll_sync1_lab="x"
    e("s_branch L_B_poll\nL_B_conv:")
    kgen_loop()
    stamp("kgen_done")
    kgen_finish()
    e("L_B_poll:")
    poll_sync1()
    stamp("polled1")
    e(f"s_cmp_eq_u32 {S(sConv)}, 0\ns_cbranch_scc1 L_B_nou")
    u_dma()
    e("L_B_nou:")
    stamp("udma_issued")
    e("s_barrier")
    stamp("beta_q")
    e(f"""s_mul_i32 s76, {S(sQ)}, {QXP}
    s_add_u32 s76, s76, {L_QX}
    v_add_u32 v2, s76, {V(vL16)}
    ds_read_b128 v[10:13], v2
    ds_read_b128 v[14:17], v2 offset:1024
    ds_read_b128 v[18:21], v2 offset:2048
    s_waitcnt lgkmcnt(0)
    s_barrier""")
    e(f"s_cmp_eq_u32 {S(sConv)}, 0\ns_cbranch_scc1 L_J1")
    expand_R()
    stamp("conv_start")
    conv()
    e("s_waitcnt lgkmcnt(0)")
    stamp("conv_done")
    e("L_J1:\ns_barrier")
    e(f"""s_lshl_b32 s76, {S(sWv)}, 9
    v_bfe_u32 v2, v0, 2, 2
    v_and_b32 v3, 1, v2
    v_mul_u32_u24 v3, {L_YS[1]-L_YS[0]}, v3
    v_lshrrev_b32 v2, 1, v2
    v_mul_u32_u24 v2, {L_YS[2]-L_YS[0]}, v2
    v_add3_u32 v2, v2, v3, s76
    v_lshrrev_b32 v3, 4, v0
    v_lshlrev_b32 v3, 5, v3
    v_and_b32 v4, 3, v0
    v_lshlrev_b32 v4, 3, v4
    v_add3_u32 v2, v2, v3, v4
    v_mov_b32 v3, {L_FLAG}
    ds_read_b32 v5, v3""")
    assert L_YS[3]-L_YS[2]==L_YS[1]-L_YS[0] and L_YS[0]==0
    for i in range(4): e(f"ds_read_b64_tr_b16 {V(vY+2*i,2)}, v2 offset:{128*i}")
    e("s_waitcnt lgkmcnt(0)\nv_readfirstlane_b32 s76, v5\ns_barrier")
    stamp("y_read")
    e("s_cmp_lg_u32 s76, 0\ns_cbranch_scc1 L_fallback")
    kv_stage_scalars(1,L_Y)
    for p,d in kv_stage_dma_list(1,L_Y): e(p); e(d)
    attention()
    e("L_tail:")
    stamp("attn_done")
    tail()
    if OPT['stamp']:
        e("L_fin:\ns_waitcnt vmcnt(0)"); stamp("end"); stamp_dump()
    e("L_exit:\ns_endpgm")
    e("L_fallback:")
    fallback()
    e("s_branch L_tail")
    e("L_codeend:")

main()
hdr=open("cdna_kernels/"+NAME+".s.ref").read().split("; Override launch")[0]
out=hdr+f"""; @launch grid=(256,1,1) block=(512,1,1) lds={LDS_SIZE}
.amdgcn_target "amdgcn-amd-amdhsa--gfx950"
.text
.globl {NAME}_kernel
.p2align 8
.type {NAME}_kernel,@function
{NAME}_kernel:
"""+"\n".join(L)+f"""
    s_endpgm
.section .rodata,"a"
.p2align 6
.amdhsa_kernel {NAME}_kernel
  .amdhsa_next_free_vgpr 256
  .amdhsa_next_free_sgpr 102
  .amdhsa_accum_offset 256
  .amdhsa_group_segment_fixed_size 0
  .amdhsa_kernarg_size 120
  .amdhsa_user_sgpr_count 2
  .amdhsa_user_sgpr_kernarg_segment_ptr 1
  .amdhsa_system_sgpr_workgroup_id_x 1
  .amdhsa_float_denorm_mode_32 3
.end_amdhsa_kernel
"""
path=sys.argv[1] if len(sys.argv)>1 else "cdna_kernels/"+NAME+".s"
open(path,"w").write(out)
errs=hz.check(L,"lin")
for a,b in LOOPS: errs+=hz.check(L[a:b]+L[a:b],f"loop{a}")
for x in sorted(set(errs)): print("HAZARD",x)
if OPT['stamp']: open(path+".stamps","w").write("\n".join(STAMPS))
print("lines",len(L))
```

```python
import sys, math, struct
import hz
NAME="concat_heads__grouped_kv_mqa__ssm_conv_s4d__prompt"
OPT=dict(stamp=0, force_fb=0, c0=2, c1=3, pa=0, bprio=0, p0=0,p1=4,p2=10,p3=16, late1=1, wrot=1, sl=2, nosig=0, pre=0, noust=0, kp=1)
for a in sys.argv[2:]:
    k,v=a.split('='); OPT[k]=int(v)
L=[]; LOOPS=[]; STAMPS=[]
def e(s):
    for x in s.split('\n'):
        x=x.strip()
        if x: L.append(('    ' if not x.endswith(':') else '')+x)
def V(a,n=1): return f"v{a}" if n==1 else f"v[{a}:{a+n-1}]"
def S(a,n=1): return f"s{a}" if n==1 else f"s[{a}:{a+n-1}]"
def nop(n):
    while n>0:
        k=min(n,16); e(f"s_nop {k-1}"); n-=k
def fb(x): return "%#x"%struct.unpack('<I',struct.pack('<f',x))[0]
WS_UT0=256; WS_GO=0x2F0000; UTP=4096; WS_KV=0x500000; WS_ST=0x580000; WS_OF=0x582000; WS_YC=0x584000; WS_YG=0x584800; WS_YT=0x980000; WS_O=0x600000; WS_STAMP=0x880000; WS_SIZE=0xC00000
TILE=2688; VF0=1024; VF1=1728; K2O=2432; HST=8*TILE
SLOT=[0,40960,81920]; WQO=16384
L_WK=81920; L_X8=133120; L_UT=143360; L_STG=153920
L_R=[81920,0]; RG=[43008,124928]; CHP=17536
L_CH=[RG[0],RG[0]+CHP,RG[1],RG[0]]
L_YC=RG[1]+25600
L_KG=124928; NCONV=214
UCP=4576; ROFF=9152; RCP=4224; KGP=6144
L_QX=150528; QXP=3072
L_FBX=78080; L_KB=163072; L_FLAG=163328
LDS_SIZE=163840
sX,sWQ,sWKV,sWO,sU,sWS,sOUT,sDBG=36,40,44,48,52,56,60,64
sWv,sQ,sB,sRB,sHG,sRot,sConv,sCI=68,69,70,71,72,73,74,75
sLoop,sSpin,sKC,sBb=96,97,98,99
sRole=100
vL16=1
Qa1,Qa2,Qb1,Qb2=10,14,16,20
vN,vOA0,vOA1,vOA2=22,23,24,25
vKV=[26,27]; vK2=[28,29]; vVa=[30,31]
vLA,vAI,vCR,vCI,vLDT,vD=10,11,12,13,14,15
vP10=9

def stamp(name):
    if not OPT['stamp']: return
    if name not in STAMPS: STAMPS.append(name)
    e(f"s_memrealtime s[92:93]\ns_waitcnt lgkmcnt(0)\nv_writelane_b32 v167, s92, {STAMPS.index(name)}")
def stamp_dyn(name,n,reg,down):
    if OPT['stamp']<2: return
    if name+"0" not in STAMPS:
        for k in range(n): STAMPS.append(name+str(k))
    i=STAMPS.index(name+"0")
    e(f"s_sub_u32 s94, {i+down}, s{reg}")
    e(f"s_memrealtime s[92:93]\ns_mov_b32 m0, s94\ns_waitcnt lgkmcnt(0)\nv_writelane_b32 v167, s92, m0")
def stamp_dump():
    if not OPT['stamp']: return
    e(f"""s_mul_i32 s94, s2, 12
    s_add_u32 s94, s94, {S(sWv)}
    s_lshl_b32 s94, s94, 8
    s_add_u32 s94, s94, {WS_STAMP}
    s_mov_b64 exec, -1
    v_lshlrev_b32 v166, 2, v0
    buffer_store_dword v167, v166, {S(sWS,4)}, s94 offen""")
def srd(s, p, nbytes):
    e(f"s_mov_b32 s{s}, s{p}\ns_mov_b32 s{s+1}, s{p+1}\ns_mov_b32 s{s+2}, {nbytes}\ns_mov_b32 s{s+3}, 0x20000")
def dma(vaddr, srd_, soff, sc1=False):
    e(f"buffer_load_dwordx4 {V(vaddr)}, {S(srd_,4)}, {soff} offen {'sc1 ' if sc1 else ''}lds")
def selb(dst,vals):
    return f"s_mul_i32 s{dst}, {S(sB)}, {vals[1]-vals[0]}\ns_add_u32 s{dst}, s{dst}, {vals[0]}"
def byq(dst,vals):
    e(f"s_mov_b32 s{dst}, {vals[0]}")
    for k in (1,2,3): e(f"s_cmp_eq_u32 {S(sQ)}, {k}\ns_cselect_b32 s{dst}, {vals[k]}, s{dst}")
def div10(dst,src): e(f"v_mul_u32_u24 {V(dst)}, 0x199a, {V(src)}\nv_lshrrev_b32 {V(dst)}, 16, {V(dst)}")
def loop_end(lab,b0):
    e(f"s_sub_u32 s{sLoop}, s{sLoop}, 1\ns_cmp_lg_u32 s{sLoop}, 0\ns_cbranch_scc1 {lab}")
    LOOPS.append((b0,len(L)))

def entry():
    e("s_cmp_ge_u32 s2, 256\ns_cbranch_scc1 L_exit")
    e("s_load_dwordx16 s[4:19], s[0:1], 0\ns_load_dwordx8 s[20:27], s[0:1], 64\ns_load_dwordx4 s[28:31], s[0:1], 96\ns_load_dwordx2 s[32:33], s[0:1], 112")
    e("s_getpc_b64 s[34:35]\nL_pc:")
    e(f"v_lshrrev_b32 v2, 6, v0\nv_and_b32 v0, 63, v0\nv_readfirstlane_b32 {S(sWv)}, v2")
    e(f"s_lshr_b32 s76, s2, 3\ns_and_b32 s77, s2, 7")
    e(f"s_cmp_lg_u32 {S(sWv)}, 3\ns_cbranch_scc1 L_nopf")
    e(f"s_lshl_b32 s78, s76, 11\nv_and_b32 v2, 15, v0\nv_lshlrev_b32 v2, 7, v2\nv_add_u32 v2, s78, v2\nv_min_u32 v2, L_codeend-L_pc-4, v2\nglobal_load_dword v163, v2, s[34:35]")
    e("L_nopf:")
    e(f"""s_and_b32 {S(sQ)}, {S(sWv)}, 3
    s_lshr_b32 {S(sRole)}, {S(sWv)}, 2
    s_and_b32 {S(sB)}, {S(sRole)}, 1
    s_and_b32 s78, s76, 3
    s_lshl_b32 s79, s77, 2
    s_add_u32 {S(sRB)}, s79, s78
    s_lshr_b32 {S(sHG)}, s76, 2
    s_lshl_b32 s78, s78, 1
    s_add_u32 s78, s78, {S(sHG)}
    s_mul_i32 s79, s78, 52
    s_lshr_b32 s79, s79, 8
    s_mul_i32 s79, s79, 5
    s_sub_u32 {S(sRot)}, s78, s79
    s_lshl_b32 s79, {S(sHG)}, 5
    s_add_u32 {S(sCI)}, s79, {S(sRB)}
    s_cmp_lt_u32 {S(sCI)}, {NCONV}
    s_cselect_b32 {S(sConv)}, 1, 0
    v_lshlrev_b32 {V(vL16)}, 4, v0
    s_cmp_eq_u32 {S(sRole)}, 0
    s_cbranch_scc1 L_Q0
    s_setprio 1""")
    div10(2,0)
    e(f"""v_mul_u32_u24 v3, 10, v2
    v_sub_u32 v3, v0, v3
    v_lshlrev_b32 v3, 4, v3
    v_mul_u32_u24 v2, 1280, v2
    v_add_u32 {V(vP10)}, v2, v3
    s_and_b32 s78, {S(sWv)}, 1
    s_lshl_b32 s79, s78, 2
    v_lshrrev_b32 v5, 4, v0
    v_add_u32 v6, s79, v5
    v_lshlrev_b32 v7, 1, v6
    v_and_b32 v8, 15, v0
    v_xor_b32 v7, v7, v8
    v_lshlrev_b32 v7, 4, v7
    v_mul_u32_u24 v6, 1280, v6
    v_add_u32 v4, v6, v7
    s_sub_u32 s75, {S(sWv)}, 4
    s_lshl_b32 s80, {S(sRB)}, 6
    s_mul_i32 s81, s75, 6
    s_add_u32 s80, s80, s81
    s_mul_i32 s80, s80, 1280
    v_add_u32 v6, s80, {V(vP10)}
    s_waitcnt lgkmcnt(0)
    s_cmp_eq_u32 {S(sB)}, 1
    s_cselect_b32 s{sWKV}, s8, s10
    s_cselect_b32 s{sWKV+1}, s9, s11
    s_mov_b32 s{sWKV+2}, 25600
    s_mov_b32 s{sWKV+3}, 0x20000
    s_cselect_b32 s82, 0, 25600
    s_lshl_b32 s83, {S(sQ)}, 10
    s_add_u32 s82, s82, s83
    s_add_u32 s82, s82, {L_WK}""")
    e(f"s_sub_u32 s82, s82, s83\ns_lshr_b32 s85, s2, 3\ns_mul_i32 s85, s85, {3*OPT['wrot']}\ns_add_u32 s85, s85, {S(sQ)}")
    for k in range(4): e("s_cmp_ge_u32 s85, 25\ns_cselect_b32 s84, 25, 0\ns_sub_u32 s85, s85, s84")
    for m in range(7):
        if m==6: e(f"s_cmp_lg_u32 {S(sQ)}, 0\ns_cbranch_scc1 L_nowk7")
        e(f"s_lshl_b32 s84, s85, 10\ns_add_u32 m0, s84, s82\ns_add_u32 s85, s85, 4"); dma(vL16,sWKV,"s84")
        if m<6: e("s_cmp_ge_u32 s85, 25\ns_cselect_b32 s84, 25, 0\ns_sub_u32 s85, s85, s84")
    e("L_nowk7:")
    srd(sX,4,2621440)
    e(f"""s_lshl_b32 s82, {S(sRB)}, 3
    s_add_u32 s82, s82, {S(sHG)}
    s_mul_i32 s82, s82, 10240
    s_lshr_b32 s83, s75, 1
    s_lshl_b32 s84, s83, 8
    s_add_u32 s84, s84, s82
    s_lshl_b32 s83, s83, 11
    s_lshl_b32 s85, s78, 10
    s_add_u32 s83, s83, s85
    s_add_u32 m0, s83, {L_X8}""")
    srd(sU,14,2621440)
    dma(4,sX,"s84")
    e(f"s_cmp_ge_u32 s75, 2\ns_cbranch_scc1 L_nox8b\ns_add_u32 m0, s85, {L_X8+4*2048}\ns_add_u32 s84, s82, 1024")
    dma(4,sX,"s84"); e("L_nox8b:")
    e(f"""s_mul_i32 s82, {S(sHG)}, 160
    s_mul_i32 s83, s75, 960
    s_add_u32 m0, s83, {L_UT}
    s_mov_b32 exec_hi, 0x0fffffff""")
    dma(6,sU,"s82")
    e(f"s_cmp_ge_u32 s75, 3\ns_cbranch_scc1 L_noub\ns_add_u32 m0, s83, {L_UT+8*960}\nv_add_u32 v6, {48*1280}, v6")
    dma(6,sU,"s82"); e("L_noub:\ns_mov_b32 exec_hi, -1")
    e(f"s_lshl_b32 s79, {S(sHG)}, 5\ns_add_u32 {S(sCI)}, s79, {S(sRB)}")
    srd(sWS,32,WS_SIZE)

vXA=100; vWA=108; vXd=109; vWd=160
sXo,sWo,sSl=86,87,90
def chunk_addr():
    e(f"""s_lshl_b32 s76, {S(sQ)}, 2
    v_lshrrev_b32 v2, 4, v0
    v_add_u32 v2, s76, v2
    v_and_b32 v3, 15, v0
    v_xor_b32 v3, v3, v2
    v_lshlrev_b32 v3, 4, v3
    v_mul_u32_u24 v2, 1280, v2
    v_add_u32 {V(vXd)}, v2, v3""")
    for p in range(3):
        e(f"""v_add_u32 v2, {64*p}, v0
        v_mul_u32_u24 v3, 0x1556, v2
        v_lshrrev_b32 v3, 16, v3
        v_mul_u32_u24 v4, 12, v3
        v_sub_u32 v4, v2, v4
        v_lshlrev_b32 v4, 4, v4
        v_mul_u32_u24 v3, 1280, v3
        v_add_u32 {V(vWd+p)}, v3, v4""")
    e(f"""s_mul_i32 s88, {S(sRB)}, 81920
    s_mul_i32 s89, {S(sHG)}, 160
    s_and_b32 s89, s89, 0xffffffc0
    s_mul_i32 s76, {S(sQ)}, 40960
    s_add_u32 s89, s89, s76
    s_mov_b32 s{sKC}, {S(sRot)}""")
def chunk_next(): e(f"s_add_u32 s{sKC}, s{sKC}, 1\ns_cmp_eq_u32 s{sKC}, 5\ns_cselect_b32 s{sKC}, 0, s{sKC}")
def chunk_dma(slot):
    e(f"""s_lshl_b32 s{sXo}, s{sKC}, 8
    s_add_u32 s{sXo}, s{sXo}, s88
    s_mul_i32 s{sWo}, s{sKC}, 163840
    s_add_u32 s{sWo}, s{sWo}, s89
    s_lshl_b32 s{sSl}, {S(sQ)}, 10
    s_mul_i32 s{sSl+1}, {S(sQ)}, 6144""")
    chunk_next()
    for m in range(4):
        e(f"s_add_u32 m0, s{sSl}, {slot+4096*m}\ns_add_u32 s84, s{sXo}, {m*16*1280}"); dma(vXd,sX,"s84")
    for g2 in range(2):
        for p in range(3):
            e(f"s_add_u32 m0, s{sSl+1}, {slot+WQO+3072*g2+1024*p}\ns_add_u32 s84, s{sWo}, {g2*16*1280}"); dma(vWd+p,sWQ,"s84")

def attn_addr():
    e(selb(76,(L_R[0],L_R[0]+HST))); e(selb(77,(L_R[1],L_R[1]+HST)))
    e(f"""v_add_u32 {V(vKV[0])}, s76, {V(vL16)}
    v_add_u32 {V(vKV[1])}, s77, {V(vL16)}
    v_and_b32 v4, 31, v0
    v_lshlrev_b32 v5, 3, v4
    v_add_u32 v5, {K2O}, v5
    v_add_u32 {V(vK2[0])}, s76, v5
    v_add_u32 {V(vK2[1])}, s77, v5
    v_lshrrev_b32 v2, 5, v0
    v_min_u32 v3, 21, v4
    v_mul_u32_u24 v5, 22, v2
    v_add_u32 v3, v3, v5
    v_lshlrev_b32 v3, 4, v3
    v_add_u32 v3, {VF0}, v3
    v_add_u32 {V(vVa[0])}, s76, v3
    v_add_u32 {V(vVa[1])}, s77, v3""")
    e(f"""s_mul_i32 s76, {S(sHG)}, 20
    s_and_b32 s77, {S(sQ)}, 1
    s_mul_i32 s77, s77, 10
    s_add_u32 s76, s76, s77
    s_mul_i32 s77, {S(sB)}, 5
    s_add_u32 s76, s76, s77
    s_mul_i32 s77, {S(sRB)}, 81920
    s_lshr_b32 s78, {S(sQ)}, 1
    s_mul_i32 s78, s78, 40960
    s_add_u32 s77, s77, s78
    s_add_u32 s77, s77, {WS_O}
    v_lshrrev_b32 v5, 4, v4
    v_mul_u32_u24 v5, 20480, v5
    v_and_b32 v6, 15, v0
    v_lshlrev_b32 v6, 4, v6
    v_add_u32 v5, v5, v6
    v_add_u32 v5, s77, v5""")
    for dst,add,useh in ((vOA0,0,1),(vOA1,2,1),(vOA2,4,0)):
        e(f"s_add_u32 s78, s76, {add}")
        e("v_add_u32 v6, s78, v2" if useh else "v_mov_b32 v6, s78")
        e(f"""v_lshrrev_b32 v7, 3, v6
        v_lshlrev_b32 v7, 10, v7
        v_bfe_u32 v8, v6, 2, 1
        v_lshlrev_b32 v8, 9, v8
        v_add_u32 v7, v7, v8
        v_and_b32 v8, 1, v6
        v_lshlrev_b32 v8, 8, v8
        v_add_u32 v7, v7, v8
        v_bfe_u32 v8, v6, 1, 1
        v_lshlrev_b32 v8, 3, v8
        v_add3_u32 {V(dst)}, v7, v8, v5""")
    e(f"v_cmp_gt_u32 vcc, 32, v0\nv_mov_b32 v7, 0x7fffffff\ns_nop 0\nv_cndmask_b32 {V(vOA2)}, v7, {V(vOA2)}, vcc")

def qproj_addr():
    e(f"""s_lshr_b32 s76, {S(sQ)}, 1
    s_lshl_b32 s76, s76, 5
    v_and_b32 v2, 31, v0
    v_add_u32 v2, s76, v2
    v_lshrrev_b32 v3, 5, v0
    v_and_b32 v4, 15, v2
    v_xor_b32 v4, v4, v3
    v_lshlrev_b32 v4, 4, v4
    v_lshlrev_b32 v2, 8, v2
    v_add_u32 {V(vXA)}, v2, v4""")
    for st in range(1,8): e(f"v_xor_b32 {V(vXA+st)}, {32*st}, {V(vXA)}")
    e(f"""s_and_b32 s76, {S(sHG)}, 1
    s_lshl_b32 s76, s76, 5
    s_and_b32 s77, {S(sQ)}, 1
    s_mul_i32 s77, s77, 80
    s_add_u32 s76, s76, s77
    s_add_u32 s76, s76, {WQO}
    v_lshlrev_b32 v3, 3, v3
    v_bfe_u32 v4, v0, 2, 2
    v_add_u32 v3, v3, v4
    v_mul_u32_u24 v3, 192, v3
    v_bfe_u32 v4, v0, 4, 1
    v_lshlrev_b32 v4, 5, v4
    v_add_u32 v3, v3, v4
    v_and_b32 v4, 3, v0
    v_lshlrev_b32 v4, 3, v4
    v_add3_u32 {V(vWA)}, v3, v4, s76""")
def q_proj():
    accA,accB=32,48; F=[64,76,88]
    def reads(st):
        b=F[st%3]
        return [f"ds_read_b128 {V(b,4)}, {V(vXA+st)}",
                f"ds_read_b64_tr_b16 {V(b+4,2)}, {V(vWA)} offset:{st*3072}",
                f"ds_read_b64_tr_b16 {V(b+6,2)}, {V(vWA)} offset:{st*3072+768}",
                f"ds_read_b64_tr_b16 {V(b+8,2)}, {V(vWA)} offset:{st*3072+40}",
                f"ds_read_b64_tr_b16 {V(b+10,2)}, {V(vWA)} offset:{st*3072+808}"]
    e(f"s_mov_b32 s{sLoop}, 5\ns_mov_b32 s79, 0\nL_qp:")
    b0=len(L)
    for x in reads(0)+reads(1): e(x)
    for st in range(8):
        if st+2<8:
            for x in reads(st+2): e(x)
        e(f"s_waitcnt lgkmcnt({5*min(2,7-st)})")
        b=F[st%3]
        e(f"v_mfma_f32_32x32x16_bf16 {V(accA,16)}, {V(b+4,4)}, {V(b,4)}, {V(accA,16)}")
        e(f"v_mfma_f32_32x32x16_bf16 {V(accB,16)}, {V(b+8,4)}, {V(b,4)}, {V(accB,16)}")
    e(f"""s_sub_u32 s{sLoop}, s{sLoop}, 1
    s_cmp_eq_u32 s{sLoop}, 0
    s_cbranch_scc1 L_qp_end
    s_add_u32 s78, s79, 40960
    s_cmp_eq_u32 s78, 122880
    s_cselect_b32 s78, 0, s78
    s_sub_u32 s77, s78, s79
    s_mov_b32 s79, s78""")
    for k in range(9): e(f"v_add_u32 {V(vXA+k)}, s77, {V(vXA+k)}")
    stamp_dyn("qp_done",4,sLoop,4)
    e("s_barrier\ns_branch L_qp")
    LOOPS.append((b0,len(L)))
    e("L_qp_end:")
    e(f"s_mov_b32 s76, {fb(20**-0.5*math.log2(math.e))}\nv_cmp_gt_u32 vcc, 32, v0"); nop(11)
    for acc,q1,q2,n in ((accA,Qa1,Qa2,2),(accB,Qb1,Qb2,3)):
        for i in range(12): e(f"v_mul_f32 v{acc+i}, s76, v{acc+i}")
        for i in range(8,12): e(f"v_cndmask_b32 v{acc+i}, 0, v{acc+i}, vcc")
        for i in range(4): e(f"v_cvt_pk_bf16_f32 v{q1+i}, v{acc+2*i}, v{acc+2*i+1}")
        for i in range(2): e(f"v_cvt_pk_bf16_f32 v{q2+i}, v{acc+8+2*i}, v{acc+9+2*i}")
        if acc==accB:
            e(f"""ds_write_b128 v8, v[10:13]
            ds_write_b128 v8, v[14:17] offset:1024
            ds_write_b128 v8, v[18:21] offset:2048""")
        e(f"v_mul_f32 v{n}, v{acc}, v{acc}")
        for i in range(1,12): e(f"v_fmac_f32 v{n}, v{acc+i}, v{acc+i}")
    e(f"v_max_u32 v2, v2, v3")
    for sh in (1,2,4,8): e(f"s_nop 1\nv_max_u32_dpp v2, v2, v2 row_ror:{sh} row_mask:0xf bank_mask:0xf")
    for op in ("v_permlane16_swap_b32","v_permlane32_swap_b32"): e(f"v_mov_b32 v3, v2\ns_nop 1\n{op} v2, v3\ns_nop 1\nv_max_u32 v2, v2, v3")
    e(f"s_lshl_b32 s76, {S(sQ)}, 2\ns_add_u32 s76, s76, {L_KB+16}\nv_mov_b32 v3, s76\nds_write_b32 v3, v2\ns_waitcnt lgkmcnt(0)")

def u_addr():
    e(f"""v_lshrrev_b32 v2, 4, v0
    v_and_b32 v3, 3, v0
    v_bfe_u32 v4, v0, 2, 2
    v_lshlrev_b32 v5, 4, v2
    v_lshlrev_b32 v6, 2, v3
    v_add3_u32 v5, v5, v6, v4
    v_mul_u32_u24 v5, 160, v5
    s_mul_i32 s76, {S(sQ)}, 40
    s_add_u32 s76, s76, {L_UT}
    v_add_u32 v56, s76, v5
    s_lshl_b32 s76, {S(sQ)}, 11
    s_add_u32 s76, s76, {L_STG}
    v_xor_b32 v5, v2, v3
    v_lshlrev_b32 v5, 5, v5
    v_lshlrev_b32 v6, 7, v3
    v_lshlrev_b32 v7, 3, v4
    v_add3_u32 v5, v5, v6, v7
    v_add_u32 v57, s76, v5
    v_bfe_u32 v2, v0, 3, 2
    v_bfe_u32 v3, v0, 1, 2
    v_xor_b32 v3, v3, v2
    v_lshlrev_b32 v3, 5, v3
    v_and_b32 v4, 1, v0
    v_lshlrev_b32 v4, 4, v4
    v_lshlrev_b32 v5, 7, v2
    v_add3_u32 v3, v3, v4, v5
    v_lshrrev_b32 v4, 5, v0
    v_lshlrev_b32 v5, 9, v4
    v_add3_u32 v58, v3, v5, s76
    v_lshrrev_b32 v2, 3, v0
    v_mul_u32_u24 v2, {UTP}, v2
    v_and_b32 v3, 7, v0
    v_lshlrev_b32 v3, 4, v3
    v_add_u32 v59, v2, v3
    s_mul_i32 s76, {S(sHG)}, 80
    s_mul_i32 s77, {S(sQ)}, 20
    s_add_u32 s76, s76, s77
    s_mul_i32 s76, s76, {UTP}
    s_lshl_b32 s77, {S(sRB)}, 7
    s_add_u32 s77, s77, s76
    s_add_u32 s77, s77, {WS_UT0}""")
def u_transpose():
    for k in range(5): e(f"ds_read_b64_tr_b16 {V(16+2*k,2)}, v56 offset:{8*k}")
    for k in range(5):
        e(f"s_waitcnt lgkmcnt(4)" if k<4 else "s_waitcnt lgkmcnt(6)")
        e(f"ds_write_b64 v57, {V(16+2*k,2)} offset:{512*k if k<4 else 0}")
        if k==3: e(f"ds_read_b128 v[36:39], v58\nds_read_b128 v[40:43], v58 offset:1024")
    e("ds_read_b128 v[44:47], v58\ns_waitcnt lgkmcnt(0)")
def u_store():
    for k in range(3):
        if k==2: e("s_mov_b32 exec_hi, 0")
        e(f"s_add_u32 s78, s77, {8*k*UTP}\nbuffer_store_dwordx4 {V(36+4*k,4)}, v59, {S(sWS,4)}, s78 offen sc1")
    e("s_mov_b32 exec_hi, -1")

def kv_addr():
    e(f"""s_lshr_b32 s76, {S(sQ)}, 1
    s_mul_i32 s76, s76, 25600
    s_and_b32 s77, {S(sQ)}, 1
    s_lshl_b32 s77, s77, 5
    s_add_u32 s76, s76, s77
    s_add_u32 s76, s76, {L_WK}
    v_lshrrev_b32 v2, 4, v0
    v_lshlrev_b32 v3, 3, v2
    v_bfe_u32 v4, v0, 2, 2
    v_add_u32 v3, v3, v4
    v_mul_u32_u24 v3, 40, v3
    v_and_b32 v4, 3, v0
    v_lshlrev_b32 v4, 3, v4
    v_add3_u32 v72, v3, v4, s76
    v_and_b32 v3, 7, v0
    v_lshlrev_b32 v4, 1, v3
    v_xor_b32 v4, v4, v2
    v_lshlrev_b32 v4, 4, v4
    v_lshlrev_b32 v3, 8, v3
    v_add_u32 v3, v3, v4
    v_add_u32 v73, {L_X8}, v3
    v_xor_b32 v74, 64, v73
    v_xor_b32 v75, 0x80, v73
    v_xor_b32 v76, 0xc0, v73
    s_lshl_b32 s76, {S(sRB)}, 1
    s_lshr_b32 s77, {S(sHG)}, 2
    s_add_u32 s76, s76, s77
    s_mul_i32 s76, s76, {TILE}
    s_add_u32 s76, s76, {WS_KV}
    s_and_b32 s77, {S(sHG)}, 3
    v_and_b32 v3, 15, v0
    s_cmp_ge_u32 {S(sQ)}, 2
    s_cbranch_scc1 L_kva_v
    s_lshl_b32 s78, s77, 3
    v_add_u32 v3, s78, v3
    s_cmp_eq_u32 {S(sQ)}, 1
    s_cbranch_scc1 L_kva_k1
    v_and_b32 v4, 1, v2
    v_lshlrev_b32 v4, 5, v4
    v_add_u32 v3, v3, v4
    v_lshlrev_b32 v3, 4, v3
    v_lshrrev_b32 v4, 1, v2
    v_lshlrev_b32 v4, 3, v4
    v_add3_u32 v77, v3, v4, s76
    s_mov_b32 s80, 0x00ff00ff
    s_mov_b32 s81, 0x00ff00ff
    s_mov_b64 s[82:83], s[80:81]
    s_branch L_kva_done
    L_kva_k1:
    v_lshlrev_b32 v3, 3, v3
    s_add_u32 s76, s76, {K2O}
    v_add_u32 v77, s76, v3
    s_mov_b32 s80, 0xff
    s_mov_b32 s81, 0
    s_mov_b64 s[82:83], s[80:81]
    s_branch L_kva_done
    L_kva_v:
    s_and_b32 s78, {S(sQ)}, 1
    s_lshl_b32 s79, s78, 4
    v_add_u32 v3, s79, v3
    v_mul_u32_u24 v4, 22, v2
    v_add_u32 v3, v3, v4
    v_lshlrev_b32 v3, 4, v3
    s_lshr_b32 s79, s77, 1
    s_mul_i32 s79, s79, {VF1-VF0}
    s_add_u32 s76, s76, s79
    s_and_b32 s79, s77, 1
    s_lshl_b32 s79, s79, 3
    s_add_u32 s76, s76, s79
    s_add_u32 s76, s76, {VF0}
    v_add_u32 v77, s76, v3
    s_cmp_eq_u32 s78, 0
    s_cselect_b32 s80, -1, 0x003f003f
    s_mov_b32 s81, 0
    s_cselect_b32 s82, -1, 0x000f000f
    s_mov_b32 s83, 0
    L_kva_done:""")
    for i in range(32,36): e(f"v_mov_b32 v{i}, 0")
def kv_proj():
    def reads(u):
        b=40+8*(u%4) if False else 112+8*(u%5)
        e(f"ds_read_b64_tr_b16 {V(b,2)}, v72 offset:{u*1280}\nds_read_b64_tr_b16 {V(b+2,2)}, v72 offset:{u*1280+160}\nds_read_b128 {V(b+4,4)}, {V(73+(u&3))} offset:{2048*(u>>2)}")
    def body(swap):
        for u in range(20):
            b=112+8*(u%5); a,c=(b+4,b) if swap else (b,b+4)
            e(f"s_waitcnt lgkmcnt({3*min(4,19-u)})\nv_mfma_f32_16x16x32_bf16 v[32:35], {V(a,4)}, {V(c,4)}, v[32:35]")
            if u+5<20: reads(u+5)
    for u in range(5): reads(u)
    e(f"s_cmp_ge_u32 {S(sQ)}, 2\ns_cbranch_scc1 L_kvV")
    body(False); e("s_branch L_kvE\nL_kvV:"); body(True); e("L_kvE:")
    e("s_waitcnt lgkmcnt(0)")
    stamp("kv_loop")
    e("s_barrier")
    e(f"""v_and_b32 v2, 15, v0
    v_cmp_eq_u32 vcc, 4, v2
    v_mov_b32 v3, 0x3f803f80
    s_nop 2
    v_cndmask_b32 v3, 0, v3, vcc
    v_cvt_pk_bf16_f32 v40, v32, v33
    v_cvt_pk_bf16_f32 v41, v34, v35
    v_mul_f32 v42, v32, v32
    v_cndmask_b32 v40, v3, v40, s[82:83]
    v_cndmask_b32 v41, v3, v41, s[82:83]
    s_mov_b64 exec, s[80:81]
    buffer_store_dwordx2 v[40:41], v77, {S(sWS,4)}, 0 offen sc1
    s_mov_b64 exec, -1
    v_fmac_f32 v42, v33, v33
    v_fmac_f32 v42, v34, v34
    v_fmac_f32 v42, v35, v35
    v_cndmask_b32 v42, 0, v42, s[82:83]
    v_mov_b32 v43, v42
    s_lshl_b32 s76, s2, 4
    s_lshl_b32 s77, {S(sQ)}, 2
    v_permlane32_swap_b32 v42, v43
    s_add_u32 s76, s76, s77
    s_add_u32 s76, s76, {WS_ST}
    v_add_f32 v42, v42, v43
    v_mov_b32 v43, v42
    s_nop 1
    v_permlane16_swap_b32 v42, v43
    s_nop 1
    v_add_f32 v42, v42, v43""")
    for sh in (1,2,4,8): e(f"s_nop 1\nv_max_u32_dpp v42, v42, v42 row_ror:{sh} row_mask:0xf bank_mask:0xf")
    e(f"""v_mov_b32 v2, 0
    s_mov_b64 exec, 1
    buffer_store_dword v42, v2, {S(sWS,4)}, s76 offen sc1
    s_lshl_b32 s76, {S(sRB)}, 6
    s_lshl_b32 s77, {S(sHG)}, 2
    s_add_u32 s76, s76, s77
    s_add_u32 s76, s76, {WS_OF}
    buffer_store_dword v2, v2, {S(sWS,4)}, s76 offen sc1
    s_cmp_ge_u32 s2, 16
    s_cbranch_scc1 L_noyr
    s_lshl_b32 s76, s2, 8
    s_add_u32 s76, s76, {WS_YC}
    buffer_store_dword v2, v2, {S(sWS,4)}, s76 offen sc1
    L_noyr:
    s_mov_b64 exec, -1""")

def poll(lab,vaddr,srd_,soff,want):
    e(f"""s_mov_b32 s{sSpin}, 0
    {lab}:
    buffer_load_dword v3, {V(vaddr)}, {S(srd_,4)}, {soff} offen sc1
    s_add_u32 s{sSpin}, s{sSpin}, 1
    s_cmp_gt_u32 s{sSpin}, 0x40000
    s_cbranch_scc1 {lab}_done
    s_waitcnt vmcnt(0)
    v_cmp_gt_u32 vcc, {want}, v3
    s_cbranch_vccz {lab}_done
    s_sleep {OPT['sl']}
    s_branch {lab}
    {lab}_done:""")
def lds_spin(lab,addr,want):
    e(f"""s_mov_b32 s{sSpin}, 0
    v_mov_b32 v2, {addr}
    {lab}:
    ds_read_b32 v3, v2
    s_add_u32 s{sSpin}, s{sSpin}, 1
    s_cmp_gt_u32 s{sSpin}, 0x1000000
    s_cbranch_scc1 {lab}_done
    s_waitcnt lgkmcnt(0)
    v_cmp_gt_u32 vcc, {want}, v3
    s_cbranch_vccz {lab}_done
    s_sleep 1
    s_branch {lab}
    {lab}_done:""")
def stage_dma(stage):
    slot=L_R[stage&1]
    for m in range(11):
        e(f"s_add_u32 s84, {S(sQ)}, {4*m}")
        if m==10: e("s_min_u32 s84, s84, 41")
        if 4*m+3<21: e(f"s_lshl_b32 s84, s84, 10\ns_add_u32 m0, s84, {slot}\ns_add_u32 s84, s84, {WS_KV+stage*HST}")
        elif 4*m>=21: e(f"s_lshl_b32 s84, s84, 10\ns_add_u32 m0, s84, {slot}\ns_add_u32 s84, s84, {WS_KV+stage*HST+32*TILE-HST}")
        else: e(f"s_cmp_ge_u32 s84, 21\ns_cselect_b32 s85, {32*TILE-HST}, 0\ns_lshl_b32 s84, s84, 10\ns_add_u32 m0, s84, {slot}\ns_add_u32 s84, s84, s85\ns_add_u32 s84, s84, {WS_KV+stage*HST}")
        dma(vL16,sWS,"s84",sc1=True)
def stats_load():
    for i in range(4): e(f"s_mov_b32 s76, {WS_ST+1024*i}\nbuffer_load_dwordx4 {V(32+4*i,4)}, {V(vL16)}, {S(sWS,4)}, s76 offen sc1")
def stats_reduce():
    e("v_max_u32 v32, v32, v36\nv_max_u32 v40, v40, v44\nv_max_u32 v33, v33, v37\nv_max_u32 v41, v41, v45")
    e("v_max3_u32 v34, v34, v35, v38\nv_max3_u32 v42, v42, v43, v39\nv_max3_u32 v34, v34, v46, v47")
    e("v_max_u32 v32, v32, v40\nv_max_u32 v33, v33, v41\nv_max_u32 v34, v34, v42")
    for sh in (1,2,4,8):
        e("s_nop 0")
        for r in (32,33,34): e(f"v_max_u32_dpp v{r}, v{r}, v{r} row_ror:{sh} row_mask:0xf bank_mask:0xf")
    for op in ("v_permlane16_swap_b32","v_permlane32_swap_b32"):
        e("v_mov_b32 v36, v32\nv_mov_b32 v37, v33\nv_mov_b32 v38, v34\ns_nop 1")
        e(f"{op} v32, v36\n{op} v33, v37\n{op} v34, v38\ns_nop 1")
        e("v_max_u32 v32, v32, v36\nv_max_u32 v33, v33, v37\nv_max_u32 v34, v34, v38")
    e(f"""v_add_f32 v32, v32, v33
    s_mov_b32 s77, 0x67800000
    v_cmp_nle_f32 vcc, v34, s77
    v_mov_b32 v33, 0x7f800000
    v_mov_b32 v2, {L_KB}
    v_cndmask_b32 v32, v32, v33, vcc
    ds_write_b32 v2, v32""")

D0,GB,ZA=16,28,44
z1,z16,z256,z512,z768,z1024,cur,cu2,tmp=60,62,64,66,68,70,72,74,76
ZE=78; CV=136; vKGw,vKGr,a2,b2,vDT,Cp=96,97,98,99,100,102
def cmul(d,a,b):
    assert d!=a and d!=b
    e(f"v_pk_mul_f32 {V(d,2)}, {V(a,2)}, {V(b,2)} op_sel:[0,0] op_sel_hi:[1,0]")
    e(f"v_pk_fma_f32 {V(d,2)}, {V(a,2)}, {V(b,2)}, {V(d,2)} op_sel:[1,1,0] op_sel_hi:[0,1,1] neg_lo:[0,1,0]")
LOG2E=0x3fb8aa3b; INV2PI=0x3e22f983
def rne_bf16(dst,src): e(f"v_cvt_pk_bf16_f32 {V(dst)}, {V(src)}, {V(src)}\nv_and_b32 {V(dst)}, 0xffff0000, {V(dst)}")
def kgen_dt():
    e(f"v_lshlrev_b32 v2, 16, {V(vLDT)}\nv_mul_f32 v2, {LOG2E:#x}, v2\nv_exp_f32 v2, v2\ns_nop 0")
    rne_bf16(vDT,2)
    e(f"""s_mul_i32 s95, {S(sQ)}, {KGP}
    s_add_u32 s95, s95, {L_KG}
    v_mul_u32_u24 v2, 96, v0
    v_add_u32 {V(vKGw)}, s95, v2
    v_lshrrev_b32 v2, 2, v0
    v_mul_u32_u24 v2, 96, v2
    v_and_b32 v3, 3, v0
    v_lshlrev_b32 v3, 3, v3
    v_add3_u32 {V(vKGr)}, v2, v3, s95""")
    for i in range(12): e(f"v_mov_b32 v{D0+i}, 0")
def kgen_setup():
    e(f"""v_and_b32 v2, 0xffff0000, {V(vLA)}
    v_and_b32 v3, 0xffff0000, {V(vAI)}
    v_and_b32 v4, 0xffff0000, {V(vCR)}
    v_and_b32 v5, 0xffff0000, {V(vCI)}
    v_mul_f32 v2, {LOG2E:#x}, v2
    v_exp_f32 v2, v2
    v_mul_f32 v3, v3, {V(vDT)}
    v_add_f32 v6, {V(vDT)}, {V(vDT)}""")
    rne_bf16(2,2)
    e(f"""v_mul_f32 {V(b2)}, {INV2PI:#x}, v3
    v_mul_f32 v2, v2, {V(vDT)}
    v_mul_f32 {V(Cp)}, v4, v6
    v_mul_f32 {V(a2)}, {LOG2E^0x80000000:#x}, v2
    v_mul_f32 {V(Cp+1)}, v5, v6""")
    for r in (vLA,vAI,vCR,vCI): e(f"v_lshlrev_b32 {V(r)}, 16, {V(r)}")
    for z,p in ((z1,1.0),(z16,16.0),(z256,256.0)):
        e(f"""v_mul_f32 v2, {fb(p)}, {V(a2)}
        v_mul_f32 v3, {fb(p)}, {V(b2)}
        v_exp_f32 v2, v2
        v_fract_f32 v3, v3
        v_cos_f32 v4, v3
        v_sin_f32 v5, v3
        s_nop 0
        v_mul_f32 {V(z)}, v2, v4
        v_mul_f32 {V(z+1)}, v2, v5""")
cvi=[0]
def put2(row,za,zb,neg=False):
    base=CV+8*((row>>3)&1); k=(row>>1)&3; ng='-' if neg else ''
    if za is None: e(f"v_cvt_pk_bf16_f32 {V(base+k)}, 1.0, {V(zb)}\nv_cvt_pk_bf16_f32 {V(base+4+k)}, 0, {V(zb+1)}")
    else: e(f"v_cvt_pk_bf16_f32 {V(base+k)}, {V(za)}, {V(zb)}\nv_cvt_pk_bf16_f32 {V(base+4+k)}, {ng}{V(za+1)}, {ng}{V(zb+1)}")
    if k==3:
        o=16*(row>>3)
        e(f"ds_write_b128 {V(vKGw)}, {V(base,4)} offset:{o}\nds_write_b128 {V(vKGw)}, {V(base+4,4)} offset:{32+o}")
def tile_reads(dst):
    for s_ in range(4): e(f"ds_read_b64_tr_b16 {V(dst+4*s_,2)}, {V(vKGr)} offset:{1536*s_}\nds_read_b64_tr_b16 {V(dst+4*s_+2,2)}, {V(vKGr)} offset:{1536*s_+32}")
def tile_mf(D):
    for s_ in range(4): e(f"s_waitcnt lgkmcnt({6-2*s_})\nv_mfma_f32_16x16x32_bf16 {V(D,4)}, {V(ZA+4*s_,4)}, {V(GB+4*s_,4)}, {V(D,4)}")
Zk=lambda k: ZE+(k-2)
def kB():
    p=Cp
    for j in range(1,16):
        n=cur if (j&1) else cu2
        cmul(n,p,z16)
        if j&1: put2(j-1,p,n,True)
        p=n
    tile_reads(GB)
def kA0():
    put2(0,None,z1); p=z1
    for ee in range(2,16):
        n = ZE+(ee-2) if ee%2==0 else cur
        cmul(n,p,z1)
        if ee&1: put2(ee-1,p,n)
        p=n
    tile_reads(ZA)
    cmul(z512,z256,z256); cmul(z768,z512,z256); cmul(z1024,z512,z512)
    tile_mf(D0)
def kA12(more):
    Z=Zk; p=z256
    for k in range(1,8):
        n=cur if (k&1) else cu2
        cmul(n,z256,Z(2*k))
        if k&1: put2(k-1,p,n)
        p=n
    for base,z in ((8,z512),(12,z768)):
        cmul(cur,z,Z(4)); put2(base,z,cur)
        cmul(cu2,z,Z(8)); cmul(cur,z,Z(12)); put2(base+2,cu2,cur)
    tile_reads(ZA)
    cmul(cur,z1024,Z(8)); put2(0,z1024,cur)
    cmul(Cp,z1024,z512); cmul(cu2,z1024,z256); cmul(z1,z1024,z768)
    cmul(cur,cu2,Z(8)); put2(2,cu2,cur)
    tile_mf(D0+4)
    cmul(cur,Cp,Z(8)); put2(4,Cp,cur)
    cmul(cur,z1,Z(8)); cmul(tmp,z1,z16); put2(6,z1,cur)
    e(f"v_cvt_pk_bf16_f32 {V(CV+8)}, {V(tmp)}, {V(tmp)}\nv_cvt_pk_bf16_f32 {V(CV+9)}, {V(tmp+1)}, {V(tmp+1)}")
    e(f"ds_write2_b32 {V(vKGw)}, {V(CV+8)}, {V(CV+9)} offset0:4 offset1:12")
    tile_reads(ZA)
    if more: kgen_setup()
    tile_mf(D0+8)
def acked():
    e(f"v_mov_b32 v2, {L_FLAG+20}\nv_mov_b32 v3, 1\ns_mov_b64 exec, 1\nds_add_u32 v2, v3\ns_mov_b64 exec, -1")
def kgen_finish():
    d=D0
    e(f"""v_and_b32 v2, 15, v0
    v_lshrrev_b32 v3, 4, v0
    v_cmp_gt_u32 vcc, 32, v0
    v_lshlrev_b32 v4, 4, v2
    v_lshlrev_b32 v5, 3, v3
    v_add_u32 v4, v4, v5
    v_lshlrev_b32 v5, 7, v3
    v_lshlrev_b32 v6, 3, v2
    v_add_u32 v5, v5, v6
    v_cndmask_b32 v4, v5, v4, vcc
    v_add_u32 v4, s95, v4
    v_lshlrev_b32 v5, 7, v3
    v_lshlrev_b32 v6, 2, v2
    v_add3_u32 v5, v5, v6, s95
    v_lshlrev_b32 v6, 16, {V(vD)}
    v_cmp_eq_u32 s[78:79], 0, v0
    v_lshlrev_b32 v8, 2, v0
    v_add_u32 v8, s95, v8
    v_cndmask_b32 v6, 0, v6, s[78:79]
    v_add_f32 v{d}, v{d}, v6
    v_cvt_pk_bf16_f32 v110, v{d+3}, v{d+2}
    v_cvt_pk_bf16_f32 v111, v{d+1}, v{d}
    v_cvt_pk_bf16_f32 v28, v{d+4}, v{d+5}
    v_cvt_pk_bf16_f32 v29, v{d+6}, v{d+7}
    v_cvt_pk_bf16_f32 v30, v{d+8}, v{d+9}
    v_cvt_pk_bf16_f32 v31, v{d+10}, v{d+11}
    v_mov_b32 v7, s95
    ds_write_b64 v4, v[28:29]
    s_mov_b64 exec, vcc
    ds_write2_b32 v5, v30, v31 offset0:128 offset1:144
    s_mov_b32 exec_lo, 0
    s_mov_b32 exec_hi, 0x8000
    ds_write_b32 v7, v30 offset:768
    s_mov_b64 exec, -1
    ds_read2_b32 v[104:105], v8 offset0:0 offset1:1
    ds_read2_b32 v[106:107], v8 offset0:64 offset1:65
    ds_read2_b32 v[108:109], v8 offset0:128 offset1:129
    s_waitcnt lgkmcnt(0)""")
def chan(dst,breg=None,b=None):
    e(f"s_mul_i32 s{dst}, {S(sCI)}, 3")
    e(f"s_add_u32 s{dst}, s{dst}, {S(breg) if breg is not None else b}\ns_min_u32 s{dst}, s{dst}, 639")
def u_dma():
    chan(77,sQ)
    e(f"s_mul_i32 s77, s77, {UTP}")
    for rho in (1,0):
        for i in range(4):
            e(f"s_add_u32 m0, s95, {rho*UCP+448+1024*i}\ns_add_u32 s78, s77, {WS_UT0-(2 if rho==0 else 0)+1024*i}"); dma(vL16,sWS,"s78",sc1=True)
def expand_pre():
    R1=RCP-4
    e(f"""s_add_u32 s76, s95, {ROFF}
    s_mov_b32 s77, 0x01000100
    s_mov_b32 s78, 0x03020302
    s_mov_b32 s79, 0x03020504
    s_mov_b32 s81, 0x01000302
    v_and_b32 v2, 15, v0
    v_lshlrev_b32 v2, 5, v2
    v_lshrrev_b32 v3, 4, v0
    v_lshlrev_b32 v3, 3, v3
    v_add_u32 v2, v2, v3
    s_add_u32 s82, s76, 4088
    v_sub_u32 v140, s82, v2
    v_lshlrev_b32 v3, 3, v0
    s_add_u32 s82, s76, 4088-512
    v_sub_u32 v141, s82, v3
    s_add_u32 s82, s76, 3056
    v_sub_u32 v142, s82, {V(vL16)}
    v_lshlrev_b32 v5, 5, v0
    s_add_u32 s82, s76, 2016
    v_sub_u32 v143, s82, v5
    v_perm_b32 v112, v105, v104, s79
    v_perm_b32 v113, v104, v104, s77
    v_perm_b32 v116, v107, v107, s77
    v_perm_b32 v117, v106, v106, s78
    v_perm_b32 v118, v106, v106, s81
    v_perm_b32 v119, v106, v106, s77
    v_perm_b32 v120, v109, v109, s77
    v_perm_b32 v121, v109, v109, s77
    v_perm_b32 v122, v108, v108, s78
    v_perm_b32 v123, v108, v108, s78
    v_perm_b32 v124, v108, v108, s78
    v_perm_b32 v125, v108, v108, s81
    v_perm_b32 v126, v108, v108, s77
    v_perm_b32 v127, v108, v108, s77
    v_add_u32 v144, {R1}, v140
    v_add_u32 v145, {R1}, v141
    v_add_u32 v146, {R1}, v142
    v_add_u32 v147, {R1}, v143
    v_mov_b32 v152, 0
    v_mov_b32 v153, 0
    v_mov_b32 v154, 0
    v_mov_b32 v155, 0
    v_lshlrev_b32 v2, 2, v0
    v_add_u32 v148, s76, v2
    v_lshrrev_b32 v3, 5, v0
    v_mul_u32_u24 v3, {UCP-512}, v3
    v_add3_u32 v149, v3, {V(vL16)}, s95
    v_mov_b32 v150, s95""")
def expand_write():
    e(f"""ds_write_b64 v140, v[110:111]
    ds_write_b64 v141, v[112:113]
    ds_write_b128 v142, v[116:119]
    ds_write_b128 v143, v[120:123]
    ds_write_b128 v143, v[124:127] offset:16
    ds_write2_b32 v144, v110, v111 offset0:0 offset1:1
    ds_write2_b32 v145, v112, v113 offset0:0 offset1:1
    ds_write2_b32 v146, v116, v117 offset0:0 offset1:1
    ds_write2_b32 v146, v118, v119 offset0:2 offset1:3
    ds_write2_b32 v147, v120, v121 offset0:0 offset1:1
    ds_write2_b32 v147, v122, v123 offset0:2 offset1:3
    ds_write2_b32 v147, v124, v125 offset0:4 offset1:5
    ds_write2_b32 v147, v126, v127 offset0:6 offset1:7
    s_mov_b32 exec_hi, 0
    s_mov_b32 exec_lo, 0xffff
    ds_write_b32 v148, v152 offset:4096
    ds_write_b32 v148, v152 offset:{RCP+4092}
    s_mov_b32 exec_lo, 0x0fffffff
    s_mov_b32 exec_hi, 0x0fffffff
    ds_write_b128 v149, v[152:155]
    s_mov_b64 exec, -1""")
def u_patch():
    e("s_mov_b64 exec, 1\nds_write_b16 v150, v152 offset:448\ns_mov_b64 exec, -1")
cACC,cU,cK,vUa,vKa=16,48,80,114,115
def conv_addr():
    e(f"""v_and_b32 v2, 1, v0
    v_mul_u32_u24 v3, {UCP}, v2
    v_bfe_u32 v4, v0, 1, 3
    v_lshlrev_b32 v4, 6, v4
    v_lshrrev_b32 v5, 4, v0
    v_lshlrev_b32 v5, 4, v5
    v_add3_u32 v3, v3, v4, v5
    s_add_u32 s78, s95, 448
    v_add_u32 {V(vUa)}, s78, v3
    v_and_b32 v3, 15, v0
    v_lshlrev_b32 v3, 2, v3
    v_sub_u32 v3, v5, v3
    v_mul_u32_u24 v2, {RCP-4}, v2
    v_sub_u32 v3, v3, v2
    s_add_u32 s78, s95, {ROFF+4092-3584+RCP-4}
    v_add_u32 {V(vKa)}, s78, v3""")
    for i in range(32): e(f"v_mov_b32 v{cACC+i}, 0")
cnum=[0]
def conv(n):
    if n==0: return
    lab=f"L_cv{cnum[0]}"; cnum[0]+=1
    e(f"s_mov_b32 s{sLoop}, {n}\n{lab}:"); b0=len(L)
    for m in range(7):
        e(f"ds_read_b64 {V(cK+4*m,2)}, {V(vKa)} offset:{512*(7-m)}\nds_read_b64 {V(cK+4*m+2,2)}, {V(vKa)} offset:{512*(7-m)+8}\nds_read_b128 {V(cU+4*m,4)}, {V(vUa)} offset:{512*m}")
    e(f"v_add_u32 {V(vKa)}, -64, {V(vKa)}\nv_add_u32 {V(vUa)}, -64, {V(vUa)}")
    for mx in range(1,7):
        e(f"s_waitcnt lgkmcnt({3*(6-mx)})")
        for ii in range(7):
            for m in range(7-ii):
                if max(ii,m)==mx or (mx==1 and max(ii,m)==0):
                    e(f"v_mfma_f32_16x16x32_bf16 {V(cACC+4*(ii+m),4)}, {V(cU+4*m,4)}, {V(cK+4*ii,4)}, {V(cACC+4*(ii+m),4)}")
    loop_end(lab,b0)
def conv7(n):
    if n==0: return
    lab=f"L_cv{cnum[0]}"; cnum[0]+=1
    SET=[(48,80),(28,136)]
    SET=[(48,80),(114-2,0)]
    def rd(ch,U,K,off):
        d=L_CH[ch]-L_CH[0]
        r=[]
        for m in range(8):
            r.append(f"ds_read_b64 {V(K+4*(7-m),2)}, {V(vK7[ch])} offset:{512*m}\nds_read_b64 {V(K+4*(7-m)+2,2)}, {V(vK7[ch])} offset:{512*m+8}\nds_read_b128 {V(U+4*m,4)}, {V(vU7[ch])} offset:{512*m}")
        return r
    e(f"s_mov_b32 s{sLoop}, {n}\n{lab}:"); b0=len(L)
    for ch in range(3):
        U,K=48,80
        for x in rd(ch,U,K,0): e(x)
        e(f"v_add_u32 {V(vK7[ch])}, -64, {V(vK7[ch])}\nv_add_u32 {V(vU7[ch])}, -64, {V(vU7[ch])}")
        for m in range(8):
            if m>=2: e(f"s_waitcnt lgkmcnt({3*(7-m)})")
            elif m==0: e("s_waitcnt lgkmcnt(15)")
            e(f"v_mfma_f32_16x16x32_bf16 {V(cACC+4*ch,4)}, {V(U+4*m,4)}, {V(K+4*(7-m),4)}, {V(cACC+4*ch,4)}")
    loop_end(lab,b0)
vU7=[114,128,136]; vK7=[115,129,137]
def conv7_addr():
    for ch in (1,2):
        d=L_CH[ch]-L_CH[0]
        e(f"v_add_u32 {V(vU7[ch])}, {d}, {V(vUa)}\nv_add_u32 {V(vK7[ch])}, {d}, {V(vKa)}")
def y_publish(seven):
    e(f"""v_lshrrev_b32 v2, 4, v0
    v_lshlrev_b32 v2, 7, v2
    v_and_b32 v3, 15, v0
    v_lshlrev_b32 v3, 2, v3
    v_add_u32 v2, v2, v3""")
    if not seven:
        chan(76,sQ); e(f"s_lshl_b32 s76, s76, 12\ns_add_u32 s76, s76, {WS_YT}")
    nop(4)
    for c in range(3 if seven else 7):
        e(f"v_cvt_pk_bf16_f32 v{48+2*c}, v{cACC+4*c}, v{cACC+4*c+1}\nv_cvt_pk_bf16_f32 v{49+2*c}, v{cACC+4*c+2}, v{cACC+4*c+3}")
        if seven: chan(76,None,c); e(f"s_lshl_b32 s76, s76, 12\ns_add_u32 s76, s76, {WS_YT+3584}")
        o=0 if seven else 512*c
        e(f"buffer_store_dword v{48+2*c}, v2, {S(sWS,4)}, s76 offen offset:{o} sc1\nbuffer_store_dword v{49+2*c}, v2, {S(sWS,4)}, s76 offen offset:{o+64} sc1")
def y_signal():
    e(f"""s_waitcnt vmcnt(0)
    v_mov_b32 v2, {L_FLAG+8}
    v_mov_b32 v3, 1
    s_mov_b64 exec, 1
    ds_add_rtn_u32 v4, v2, v3
    s_waitcnt lgkmcnt(0)
    v_readfirstlane_b32 s76, v4
    s_nop 1
    s_cmp_lg_u32 s76, 3
    s_cbranch_scc1 L_noysig""")
    chan(76,None,0); chan(77,None,2)
    e("""s_mul_i32 s76, s76, 52429
    s_lshr_b32 s76, s76, 22
    s_mul_i32 s77, s77, 52429
    s_lshr_b32 s77, s77, 22""")
    for k,g in enumerate((76,77)):
        if k==1: e("s_cmp_eq_u32 s76, s77\ns_cbranch_scc1 L_noysig")
        e(f"""s_lshl_b32 s78, s{g}, 8
        s_add_u32 s78, s78, {WS_YC}
        v_mov_b32 v2, 0
        v_mov_b32 v3, 1
        buffer_atomic_add v3, v2, {S(sWS,4)}, s78 offen sc0 sc1
        s_mul_i32 s79, s{g}, 80
        s_add_u32 s80, s79, 79
        s_mul_i32 s79, s79, 21846
        s_lshr_b32 s79, s79, 16
        s_mul_i32 s80, s80, 21846
        s_lshr_b32 s80, s80, 16
        s_sub_u32 s79, s80, s79
        s_waitcnt vmcnt(0)
        v_readfirstlane_b32 s80, v3
        s_nop 1
        s_cmp_lg_u32 s79, s80
        s_cbranch_scc1 L_noygo{k}
        s_add_u32 s78, s78, {WS_YG-WS_YC-2048*0}
        v_mov_b32 v3, 1
        buffer_store_dword v3, v2, {S(sWS,4)}, s78 offen sc1
        L_noygo{k}:""")
    e("L_noysig:\ns_mov_b64 exec, -1")
def y_consume():
    e(f"s_cmp_lg_u32 {S(sQ)}, 0\ns_cbranch_scc1 L_y_wait\ns_lshl_b32 s78, {S(sHG)}, 8\ns_add_u32 s78, s78, {WS_YG}\nv_mov_b32 v2, 0")
    poll("L_poll3",2,sWS,"s78",1)
    e(f"v_mov_b32 v2, {L_FLAG+16}\nv_mov_b32 v3, 1\nds_write_b32 v2, v3\ns_branch L_y_go\nL_y_wait:")
    lds_spin("L_spin3",L_FLAG+16,1)
    e("L_y_go:")
    stamp("y_polled")
    e(f"""s_mul_i32 s76, {S(sHG)}, {80*4096}
    s_lshl_b32 s77, {S(sRB)}, 7
    s_add_u32 s76, s76, s77
    s_lshl_b32 s77, {S(sQ)}, 5
    s_add_u32 s76, s76, s77
    s_add_u32 s76, s76, {WS_YT}
    s_mul_i32 s77, {S(sQ)}, 2560
    s_add_u32 s77, s77, {L_YC}
    v_lshrrev_b32 v2, 1, v0
    v_lshlrev_b32 v2, 12, v2
    v_and_b32 v3, 1, v0
    v_lshlrev_b32 v3, 4, v3
    v_add_u32 v2, v2, v3""")
    for i in range(3):
        if i==2: e("s_mov_b32 exec_hi, 0")
        e(f"s_add_u32 m0, s77, {1024*i}\ns_add_u32 s78, s76, {32*4096*i}"); dma(2,sWS,"s78",sc1=True)
    e("s_mov_b32 exec_hi, -1")
    e(f"""v_lshrrev_b32 v2, 2, v0
    v_lshlrev_b32 v2, 5, v2
    v_and_b32 v3, 3, v0
    v_lshlrev_b32 v3, 3, v3
    v_add3_u32 v4, v2, v3, s77
    v_and_b32 v2, 15, v0
    v_mul_u32_u24 v2, 160, v2
    v_lshrrev_b32 v3, 4, v0
    v_lshlrev_b32 v3, 3, v3
    v_add3_u32 v5, v2, v3, s77
    v_add_u32 v6, s77, {V(vL16)}
    s_lshl_b32 s76, {S(sRB)}, 6
    s_lshl_b32 s78, {S(sQ)}, 4
    s_add_u32 s76, s76, s78
    s_mul_i32 s76, s76, 2560
    s_mul_i32 s78, {S(sHG)}, 160
    s_add_u32 s76, s76, s78
    s_add_u32 s76, s76, 1280""")
    for p in range(3):
        e(f"v_add_u32 v2, {64*p}, v0"); div10(3,2)
        e(f"v_mul_u32_u24 v3, 1280, v3\nv_add_u32 v{40+p}, v3, v{130+p}")
    e("s_waitcnt vmcnt(0)")
    for k in range(5): e(f"ds_read_b64_tr_b16 {V(16+2*k,2)}, v4 offset:{512*k}")
    e("s_waitcnt lgkmcnt(0)")
    for k in range(5): e(f"ds_write_b64 v5, {V(16+2*k,2)} offset:{32*k}")
    for p in range(3): e(f"ds_read_b128 {V(28+4*p,4)}, v6 offset:{1024*p}")
    for p in range(3):
        e(f"s_waitcnt lgkmcnt({2-p})")
        if p==2: e("s_mov_b32 exec_hi, 0")
        e(f"buffer_store_dwordx4 {V(28+4*p,4)}, v{40+p}, {S(sOUT,4)}, s76 offen")
    e("s_mov_b32 exec_hi, -1")
def wo_patterns(base):
    for p in range(5):
        e(f"v_add_u32 v2, {64*p}, v0"); div10(3,2)
        e(f"""v_mul_u32_u24 v4, 10, v3
        v_sub_u32 v4, v2, v4
        v_lshlrev_b32 v4, 4, v4
        v_mul_u32_u24 v3, 1280, v3
        v_add_u32 {V(base+p)}, v3, v4""")
def wo_prefetch():
    e(f"""s_lshr_b32 s84, s2, 3
    s_lshl_b32 s84, s84, 2
    s_add_u32 s84, s84, {S(sQ)}
    s_mul_i32 s84, s84, 6400
    v_lshlrev_b32 v2, 7, v0
    s_mov_b32 exec_hi, 0x3ffff
    buffer_load_dword v162, v2, {S(sWO,4)}, s84 offen
    s_mov_b32 exec_hi, -1""")
def wo_piece(pat, step_expr_reg, lds_reg):
    e(f"s_mul_i32 s84, s{step_expr_reg}, {32*1280}\ns_mul_i32 s85, {S(sHG)}, 160\ns_add_u32 s84, s84, s85")
    for p in range(5):
        e(f"s_add_u32 m0, s{lds_reg}, {1024*p}\ns_nop 0"); dma(pat+p,sWO,"s84")

SA,SB,PA,PB,OA,OB,K1,K2=32,48,64,72,80,96,112,116
VB=[120,128]; NA,NB=136,152
def valu_half(Sv,Pv):
    ex=[f"v_exp_f32 v{Sv+i}, v{Sv+i}" for i in range(16)]
    c=[f"v_cvt_pk_bf16_f32 v{Pv+i}, v{Sv+2*i}, v{Sv+2*i+1}" for i in range(8)]
    return [ex[0],ex[1],ex[2],ex[3],ex[4],ex[5],c[0],ex[6],ex[7],c[1],ex[8],ex[9],c[2],ex[10],ex[11],c[3],ex[12],ex[13],c[4],ex[14],ex[15],c[5],c[6],c[7]]
def qk(Sm,q1,q2,C=None):
    return [f"v_mfma_f32_32x32x16_bf16 {V(Sm,16)}, {V(K1,4)}, {V(q1,4)}, {'0' if C is None else V(C,16)}",
            f"v_mfma_f32_32x32x8bf16_1k {V(Sm,16)}, {V(K2,2)}, {V(q2,2)}, {V(Sm,16)}"]
def pv(Om,Pm,Vb,first=False):
    return [f"v_mfma_f32_32x32x16_bf16 {V(Om,16)}, {V(Vb+4*i,4)}, {V(Pm+4*i,4)}, {'0' if (first and i==0) else V(Om,16)}" for i in range(2)]
def kreads(t):
    sl=(t>>3)&1; o=(t&7)*TILE
    return [f"ds_read_b128 {V(K1,4)}, {V(vKV[sl])} offset:{o}", f"ds_read_b64 {V(K2,2)}, {V(vK2[sl])} offset:{o}"]
def vreads(t):
    sl=(t>>3)&1; o=(t&7)*TILE
    return [f"ds_read_b128 {V(VB[t&1]+4*i,4)}, {V(vVa[sl])} offset:{o+i*(VF1-VF0)}" for i in range(2)]
POS=(OPT['p0'],OPT['p1'],OPT['p2'],OPT['p3'])
def phase(Sv,Pv,mf,after,pre):
    v=valu_half(Sv,Pv)
    for i in range(len(v)):
        for k,p in enumerate(POS):
            if p==i:
                if pre.get(k): e(pre[k])
                if mf[k]: e(mf[k])
                for x in after.get(k,[]): e(x)
        e(v[i])
def attention():
    e("s_waitcnt lgkmcnt(0)")
    for x in qk(SA,Qa1,Qa2): e(x)
    nop(12)
    stamp("attn_start")
    for t in range(32):
        mf=qk(SB,Qb1,Qb2)+(pv(OB,PB,VB[(t-1)&1],t==1) if t>=1 else [None]*2)
        after={}; pre={}
        if t<31:
            kr=kreads(t+1); after[0]=[kr[0]]; after[1]=[kr[1]]
        if t in (7,15,23): after[0]=["s_waitcnt lgkmcnt(0)","s_barrier"]+after[0]
        if OPT['pa']==1: pre[0]=f"s_setprio {1+(t&1)}"
        if OPT['pa']==2 and t%8==0: pre[0]=f"s_setprio {1+(((t>>3)&1))}"
        phase(SA,PA,mf,after,pre)
        mf=(qk(SA,Qa1,Qa2) if t<31 else [None]*2)+pv(OA,PA,VB[t&1],t==0)
        after={}; pre={}
        pre[0]="s_waitcnt lgkmcnt(0)"
        if t<31:
            vr=vreads(t+1); after[0]=[vr[0]]; after[1]=[vr[1]]
        phase(SB,PB,mf,after,pre)
    nop(2)
    for x in pv(OB,PB,VB[1]): e(x)
def fallback():
    e(f"""s_mul_i32 s88, {S(sB)}, {32*TILE}
    s_add_u32 s88, s88, {WS_KV}
    v_and_b32 v3, 31, v0
    v_lshlrev_b32 v4, 3, v3
    v_lshrrev_b32 v2, 5, v0
    v_min_u32 v3, 21, v3
    v_mul_u32_u24 v2, 22, v2
    v_add_u32 v3, v3, v2
    v_lshlrev_b32 v5, 4, v3
    v_mov_b32 v6, 0xff800000
    v_mov_b32 v7, 0xff800000
    s_waitcnt lgkmcnt(0)""")
    def kload():
        e(f"buffer_load_dwordx4 {V(K1,4)}, {V(vL16)}, {S(sWS,4)}, s84 offen sc1\nbuffer_load_dwordx2 {V(K2,2)}, v4, {S(sWS,4)}, s84 offen offset:{K2O} sc1")
    e(f"s_mov_b32 s84, s88\ns_mov_b32 s{sLoop}, 32\nL_fb1:"); b0=len(L)
    kload(); e("s_waitcnt vmcnt(0)")
    for x in qk(SA,Qa1,Qa2)+qk(SB,Qb1,Qb2): e(x)
    nop(12)
    for Sm,r in ((SA,6),(SB,7)):
        for i in range(8): e(f"v_max3_f32 v{r}, v{r}, v{Sm+2*i}, v{Sm+2*i+1}")
    e(f"s_add_u32 s84, s84, {TILE}"); loop_end("L_fb1",b0)
    for r in (6,7): e(f"v_mov_b32 v8, v{r}\ns_nop 1\nv_permlane32_swap_b32 v{r}, v8\ns_nop 1\nv_max_f32 v{r}, v{r}, v8")
    e(f"""s_lshl_b32 s76, {S(sWv)}, 8
    s_add_u32 s77, s76, {L_FBX}
    v_add_u32 v3, s77, v4
    ds_write_b64 v3, v[6:7]
    s_xor_b32 s76, s76, 1024
    s_add_u32 s77, s76, {L_FBX}
    v_add_u32 v3, s77, v4
    s_waitcnt lgkmcnt(0)
    s_barrier
    ds_read_b64 v[8:9], v3
    s_waitcnt lgkmcnt(0)
    v_max_f32 v6, v6, v8
    v_max_f32 v7, v7, v9""")
    for i in range(16): e(f"v_sub_f32 v{NA+i}, 0, v6\nv_sub_f32 v{NB+i}, 0, v7\nv_mov_b32 v{OA+i}, 0\nv_mov_b32 v{OB+i}, 0")
    e(f"s_mov_b32 s84, s88\ns_mov_b32 s{sLoop}, 32\nL_fb2:"); b0=len(L)
    kload()
    for i in range(2): e(f"buffer_load_dwordx4 {V(VB[0]+4*i,4)}, v5, {S(sWS,4)}, s84 offen offset:{VF0+i*(VF1-VF0)} sc1")
    e("s_waitcnt vmcnt(0)")
    for x in qk(SA,Qa1,Qa2,NA)+qk(SB,Qb1,Qb2,NB): e(x)
    nop(12)
    for Sm,Pm,Om in ((SA,PA,OA),(SB,PB,OB)):
        for x in valu_half(Sm,Pm): e(x)
        nop(2)
        for x in pv(Om,Pm,VB[0]): e(x)
    e(f"s_add_u32 s84, s84, {TILE}"); loop_end("L_fb2",b0)
    e("s_barrier\ns_barrier")

def tail():
    EX=L_R[1]; OS=L_R[1]+24576
    e(f"s_cmp_eq_u32 {S(sB)}, 0\ns_cbranch_scc1 L_noswap"); nop(12)
    for i in range(12): e(f"v_swap_b32 v{OA+i}, v{OB+i}")
    e("L_noswap:")
    e(f"""s_mul_i32 s76, {S(sWv)}, 3072
    s_add_u32 s76, s76, {EX}
    v_add_u32 v2, s76, {V(vL16)}
    s_xor_b32 s77, {S(sWv)}, 4
    s_mul_i32 s77, s77, 3072
    s_add_u32 s77, s77, {EX}
    v_add_u32 v3, s77, {V(vL16)}"""); nop(5)
    e("s_barrier")
    stamp("f1")
    for i in range(3): e(f"ds_write_b128 v2, {V(OB+4*i,4)} offset:{1024*i}")
    e("s_waitcnt lgkmcnt(0)\ns_barrier")
    for i in range(3): e(f"ds_read_b128 {V(32+4*i,4)}, v3 offset:{1024*i}")
    e("s_waitcnt lgkmcnt(0)")
    e(f"v_add_f32 v{OA+8}, v{OA+8}, v40")
    for i in list(range(8))+[9,10,11]: e(f"v_add_f32 v{OA+i}, v{OA+i}, v{32+i}")
    e(f"v_mov_b32 v4, v{OA+8}\nv_mov_b32 v5, v{OA+8}\ns_nop 1\nv_permlane32_swap_b32 v4, v5\ns_nop 1\nv_rcp_f32 v5, v5\ns_nop 0")
    for i in range(12): e(f"v_mul_f32 v{OA+i}, v{OA+i}, v5")
    for i in range(6): e(f"v_cvt_pk_bf16_f32 v{32+i}, v{OA+2*i}, v{OA+2*i+1}")
    for i,a in enumerate((vOA0,vOA1,vOA2)): e(f"buffer_store_dwordx2 {V(32+2*i,2)}, {V(a)}, {S(sWS,4)}, 0 offen sc1")
    stamp("o_issue")
    WA,WB,WC,vOl,vOs,vOr,vOg,vFl=10,11,9,12,13,14,15,8
    e(selb(76,(L_R[0],L_R[0]+20480))); e(selb(77,(RG[0],RG[0]+30720))); e(selb(78,(RG[0]+5120,RG[1])))
    e(f"""v_lshrrev_b32 v2, 5, v0
    v_lshlrev_b32 v2, 4, v2
    v_bfe_u32 v3, v0, 4, 1
    v_lshlrev_b32 v3, 2, v3
    v_bfe_u32 v4, v0, 2, 2
    v_add3_u32 v2, v2, v3, v4
    v_mul_u32_u24 v2, 160, v2
    v_and_b32 v3, 3, v0
    v_lshlrev_b32 v3, 3, v3
    v_add3_u32 {V(WA)}, v2, v3, s76
    v_add3_u32 {V(WB)}, v2, v3, s77
    v_add3_u32 {V(WC)}, v2, v3, s78""")
    WF=56; OF=16; ACC=136
    def wr(sp,slot):
        base,o=(WA,sp*5120) if sp<4 else (WB,0) if sp==4 else (WC,(sp-5)*5120)
        r=[]
        for ct in range(5):
            b=WF+20*slot+4*ct
            r+=[f"ds_read_b64_tr_b16 {V(b,2)}, {V(base)} offset:{o+32*ct}", f"ds_read_b64_tr_b16 {V(b+2,2)}, {V(base)} offset:{o+32*ct+1280}"]
        return r
    e(f"""s_mul_i32 s76, {S(sRB)}, 81920
    s_mul_i32 s77, {S(sQ)}, 20480
    s_add_u32 s76, s76, s77
    s_mul_i32 s77, {S(sB)}, 10240
    s_add_u32 s76, s76, s77
    s_add_u32 s76, s76, {WS_O}
    v_add_u32 {V(vOl)}, s76, {V(vL16)}
    s_lshl_b32 s76, {S(sQ)}, 4
    v_and_b32 v2, 15, v0
    v_add_u32 v2, s76, v2
    v_mul_u32_u24 v2, 160, v2
    v_lshrrev_b32 v3, 4, v0
    v_lshlrev_b32 v3, 3, v3
    v_add_u32 v2, v2, v3
    v_add_u32 {V(vOs)}, {OS}, v2
    s_mul_i32 s76, {S(sWv)}, 960
    s_add_u32 s76, s76, {OS}
    v_add_u32 {V(vOr)}, s76, {V(vL16)}""")
    div10(2,0)
    e(f"""v_mul_u32_u24 v3, 10, v2
    v_sub_u32 v3, v0, v3
    v_lshlrev_b32 v3, 4, v3
    v_mul_u32_u24 v2, 2560, v2
    v_add_u32 {V(vOg)}, v2, v3
    v_and_b32 v2, 7, v0
    v_lshlrev_b32 {V(vFl)}, 2, v2""")
    e("s_waitcnt vmcnt(0)\ns_barrier")
    stamp("o_acked")
    e(f"""s_cmp_lg_u32 {S(sWv)}, 0
    s_cbranch_scc1 L_noflag
    s_lshl_b32 s76, {S(sRB)}, 6
    s_lshl_b32 s77, {S(sHG)}, 2
    s_add_u32 s76, s76, s77
    s_add_u32 s76, s76, {WS_OF}
    v_mov_b32 v2, 0
    v_mov_b32 v3, 1
    s_mov_b64 exec, 1
    buffer_store_dword v3, v2, {S(sWS,4)}, s76 offen sc1
    s_mov_b64 exec, -1
    L_noflag:""")
    for sp in range(4):
        for x in wr(sp,sp): e(x)
    e(f"s_cmp_lg_u32 {S(sWv)}, 0\ns_cbranch_scc1 L_nopoll2\ns_lshl_b32 s76, {S(sRB)}, 6\ns_add_u32 s76, s76, {WS_OF}")
    poll("L_poll2",vFl,sWS,"s76",1)
    e("L_nopoll2:\ns_barrier")
    stamp("polled")
    for sp in range(10):
        if sp in (4,8): e(f"v_add_u32 {V(vOl)}, 4096, {V(vOl)}")
        e(f"buffer_load_dwordx4 {V(OF+4*sp,4)}, {V(vOl)}, {S(sWS,4)}, 0 offen offset:{1024*(sp%4)} sc1")
    for sp in range(10):
        slot=sp%4
        w=f"s_waitcnt vmcnt({9-sp})"
        if sp==0: w+=" lgkmcnt(0)"
        elif sp>=4: w+=" lgkmcnt(%d)"%(0 if sp==9 else 10 if sp>=8 else 15)
        e(w)
        if 4<=sp<8: pass
        for ct in range(5):
            e(f"v_mfma_f32_16x16x32_bf16 {V(ACC+4*ct,4)}, {V(WF+20*slot+4*ct,4)}, {V(OF+4*sp,4)}, {'0' if sp==0 else V(ACC+4*ct,4)}")
        if sp<6:
            for x in wr(sp+4,slot): e(x)
    stamp("oproj_done")
    e(f"""s_mul_i32 s76, {S(sWv)}, 3072
    s_add_u32 s76, s76, {EX}
    v_add_u32 v2, s76, {V(vL16)}
    s_xor_b32 s77, {S(sWv)}, 4
    s_mul_i32 s77, s77, 3072
    s_add_u32 s77, s77, {EX}
    v_add_u32 v3, s77, {V(vL16)}
    s_cmp_eq_u32 {S(sB)}, 0
    s_cbranch_scc0 L_red_b""")
    def red(send,keep):
        for i,ct in enumerate(send): e(f"ds_write_b128 v2, {V(ACC+4*ct,4)} offset:{1024*i}")
        e("s_waitcnt lgkmcnt(0)\ns_barrier")
        for i,ct in enumerate(keep): e(f"ds_read_b128 {V(16+4*i,4)}, v3 offset:{1024*i}")
        for i,ct in enumerate(keep):
            e(f"s_waitcnt lgkmcnt({len(keep)-1})")
            for r in range(4): e(f"v_add_f32 v{ACC+4*ct+r}, v{ACC+4*ct+r}, v{16+4*i+r}")
            e(f"v_cvt_pk_bf16_f32 v{32+2*i}, v{ACC+4*ct}, v{ACC+4*ct+1}\nv_cvt_pk_bf16_f32 v{33+2*i}, v{ACC+4*ct+2}, v{ACC+4*ct+3}")
            e(f"ds_write_b64 {V(vOs)}, {V(32+2*i,2)} offset:{32*ct}")
    nop(8); red((3,4),(0,1,2)); e("s_branch L_red_j\nL_red_b:"); nop(8); red((0,1,2),(3,4)); e("L_red_j:")
    e(f"""s_lshl_b32 s76, {S(sRB)}, 6
    s_mul_i32 s77, {S(sWv)}, 6
    s_add_u32 s76, s76, s77
    s_mul_i32 s76, s76, 2560
    s_mul_i32 s77, {S(sHG)}, 160
    s_add_u32 s76, s76, s77
    s_add_u32 s77, s76, {48*2560}
    s_waitcnt lgkmcnt(0)
    s_barrier
    ds_read_b128 v[16:19], {V(vOr)}
    ds_read_b128 v[20:23], {V(vOr)} offset:{8*960}
    s_mov_b32 exec_hi, 0x0fffffff
    s_waitcnt lgkmcnt(1)
    buffer_store_dwordx4 v[16:19], {V(vOg)}, {S(sOUT,4)}, s76 offen
    s_cmp_ge_u32 {S(sWv)}, 3
    s_cbranch_scc1 {'L_fin' if OPT['stamp'] else 'L_exit'}
    s_cmp_eq_u32 {S(sWv)}, 2
    s_cselect_b32 exec_hi, 0xff, exec_hi
    s_waitcnt lgkmcnt(0)
    buffer_store_dwordx4 v[20:23], {V(vOg)}, {S(sOUT,4)}, s77 offen""")

def main():
    entry()
    if OPT['stamp']: e("v_mov_b32 v167, 0")
    stamp("issued0")
    e(f"s_barrier\ns_cmp_eq_u32 {S(sRole)}, 2\ns_cbranch_scc1 L_B0")
    e(f"s_mov_b32 s76, {WS_GO}\nv_mov_b32 v2, 0\nbuffer_load_dwordx2 v[164:165], v2, {S(sWS,4)}, s76 offen sc1")
    srd(sWQ,6,819200)
    kv_addr(); chunk_addr(); chunk_next(); chunk_next(); attn_addr()
    srd(sWO,12,819200); srd(sOUT,28,5242880)
    e("s_waitcnt vmcnt(0)\ns_barrier")
    stamp("beta_a")
    kv_proj()
    stamp("kv_done")
    chunk_dma(SLOT[2])
    stamp("c2_issued")
    e("s_barrier")
    stamp("beta_1")
    e("s_waitcnt vmcnt(10)"); acked()
    chunk_dma(SLOT[0])
    e("s_waitcnt vmcnt(10)")
    stamp("c2_landed")
    e("s_barrier")
    stamp("beta_2")
    chunk_dma(SLOT[1])
    e("s_waitcnt vmcnt(10)\ns_barrier")
    stamp("beta_3")
    e("s_waitcnt vmcnt(0)")
    stamp("c4_landed")
    e("s_barrier")
    stamp("beta_4")
    e(f"""s_cmp_lg_u32 {S(sQ)}, 0
    s_cbranch_scc1 L_k_wait
    s_mov_b32 s{sSpin}, 0
    s_mov_b32 s76, {WS_GO}
    v_mov_b32 v2, 0
    L_poll1:
    buffer_load_dwordx2 v[4:5], v2, {S(sWS,4)}, s76 offen sc1
    s_add_u32 s{sSpin}, s{sSpin}, 1
    s_cmp_gt_u32 s{sSpin}, 0x40000
    s_cbranch_scc1 L_poll1_done
    s_waitcnt vmcnt(0)
    v_cmp_eq_u32 vcc, v4, v164
    v_cmp_eq_u32 s[78:79], v5, v165
    s_nop 1
    s_or_b64 vcc, vcc, s[78:79]
    s_cbranch_vccz L_poll1_done
    s_sleep {OPT['sl']}
    s_branch L_poll1
    L_poll1_done:
    v_mov_b32 v2, {L_FLAG+4}
    v_mov_b32 v3, 1
    ds_write_b32 v2, v3
    s_branch L_k_go
    L_k_wait:""")
    lds_spin("L_spin1",L_FLAG+4,1)
    e("L_k_go:")
    stamp("polled1")
    stats_load()
    stage_dma(0)
    stamp("st0_issued")
    e("s_waitcnt vmcnt(11)"); stats_reduce()
    e("s_waitcnt vmcnt(0) lgkmcnt(0)\ns_barrier")
    stamp("beta_q")
    e(f"""s_mul_i32 s76, {S(sQ)}, {QXP}
    s_add_u32 s76, s76, {L_QX}
    v_add_u32 v2, s76, {V(vL16)}
    ds_read_b128 v[10:13], v2
    ds_read_b128 v[14:17], v2 offset:1024
    ds_read_b128 v[18:21], v2 offset:2048
    s_branch L_A1""")
    e("L_Q0:")
    if OPT['stamp']: e("v_mov_b32 v167, 0")
    chunk_addr(); qproj_addr()
    e(f"s_cmp_lg_u32 {S(sQ)}, 0\ns_cbranch_scc1 L_noflaginit\nv_lshlrev_b32 v2, 2, v0\nv_add_u32 v2, {L_FLAG}, v2\nv_mov_b32 v3, 0\nds_write_b32 v2, v3\nL_noflaginit:")
    e("s_waitcnt lgkmcnt(0)")
    srd(sX,4,2621440); srd(sWQ,6,819200); srd(sWS,32,WS_SIZE)
    stamp("issued0")
    e("s_barrier")
    chunk_dma(SLOT[0])
    if not OPT['late1']: chunk_dma(SLOT[1])
    srd(sWO,12,819200); srd(sOUT,28,5242880)
    attn_addr()
    for i in range(32): e(f"v_mov_b32 v{32+i}, 0")
    e(f"s_mul_i32 s76, {S(sQ)}, {QXP}\ns_add_u32 s76, s76, {L_QX}\nv_add_u32 v8, s76, {V(vL16)}")
    e("s_barrier")
    if OPT['late1']: chunk_dma(SLOT[1])
    stamp("c1_issued")
    e("s_waitcnt vmcnt(10)")
    stamp("c0_landed")
    e("s_barrier")
    stamp("beta_kv")
    L.append("    ;QPROJ")
    q_proj_patch()
    stamp("qproj_done")
    e("s_barrier")
    stamp("beta_q")
    e("L_A1:")
    e(f"v_mov_b32 v2, {L_KB}\nds_read_b32 v3, v2\nds_read_b128 v[4:7], v2 offset:16")
    for x in kreads(0)+vreads(0): e(x)
    e(f"""s_setprio 1
    s_mov_b32 s76, {fb(1e-30 if OPT['force_fb'] else 48.0*48.0/2.2)}
    s_waitcnt lgkmcnt(4)
    v_max3_u32 v4, v4, v5, v6
    v_max_u32 v4, v4, v7
    v_mul_f32 v3, v3, v4
    v_cmp_nle_f32 vcc, v3, s76
    s_cbranch_vccnz L_fallback""")
    attention()
    e("L_tail:")
    stamp("attn_done")
    tail()
    if OPT['stamp']:
        e("L_fin:\ns_waitcnt vmcnt(0)"); stamp("end"); stamp_dump()
    e("L_exit:\ns_endpgm")
    e("L_fallback:"); fallback(); e("s_branch L_tail")
    e("L_B0:")
    e(f"s_cmp_lt_u32 {S(sQ)}, 3\ns_cselect_b32 s101, {S(sConv)}, 0\ns_cmp_eq_u32 s101, 0\ns_cbranch_scc1 L_noparam")
    chan(82,sQ)
    e(f"""s_lshl_b32 s83, s82, 8
    v_lshlrev_b32 v2, 2, v0
    v_add_u32 v2, s83, v2
    s_lshl_b32 s82, s82, 1
    v_mov_b32 v3, s82
    global_load_dword {V(vLA)}, v2, s[16:17]
    global_load_dword {V(vAI)}, v2, s[18:19]
    global_load_dword {V(vCR)}, v2, s[20:21]
    global_load_dword {V(vCI)}, v2, s[22:23]
    global_load_ushort {V(vLDT)}, v3, s[24:25]
    global_load_ushort {V(vD)}, v3, s[26:27]
    L_noparam:""")
    e(f"s_mov_b32 s76, {WS_GO}\nv_mov_b32 v2, 0\nbuffer_load_dwordx2 v[164:165], v2, {S(sWS,4)}, s76 offen sc1")
    u_addr()
    srd(sWO,12,819200); srd(sOUT,28,5242880); srd(sDBG,30,256)
    e("s_waitcnt vmcnt(0)\ns_barrier")
    stamp("beta_a")
    u_transpose()
    stamp("ut_done")
    e("s_barrier")
    u_store()
    e("s_cmp_eq_u32 s101, 0\ns_cbranch_scc1 L_B_nogen")
    e(f"s_setprio {OPT['kp']}")
    kgen_dt(); kgen_setup(); kB()
    e("s_barrier")
    kA0()
    e("s_waitcnt vmcnt(0)"); acked()
    kA12(True)
    stamp("kg_p0")
    e("s_barrier")
    kB()
    e("s_barrier")
    kA0()
    e("s_barrier")
    kA12(False); kgen_finish()
    stamp("kgen_done")
    byq(95,L_CH); expand_pre()
    e("s_branch L_B_gen\nL_B_nogen:\ns_barrier\ns_waitcnt vmcnt(0)")
    acked()
    e(f"s_cmp_lg_u32 {S(sQ)}, 3\ns_cbranch_scc1 L_nosig")
    lds_spin("L_spin0",L_FLAG+20,8)
    e(f"""s_and_b32 s76, s2, 1
    s_lshl_b32 s77, s76, 7
    v_mov_b32 v2, 0
    v_mov_b32 v3, 1
    s_mov_b64 exec, 1
    buffer_atomic_add v3, v2, {S(sDBG,4)}, s77 offen sc0 sc1
    s_waitcnt vmcnt(0)
    v_and_b32 v3, 127, v3
    s_nop 0
    v_readfirstlane_b32 s77, v3
    s_nop 1
    s_cmp_lg_u32 s77, 127
    s_cbranch_scc1 L_nogo
    s_cmp_eq_u32 s76, 0
    s_cselect_b64 vcc, -1, 0
    s_lshl_b32 s76, s76, 2
    s_add_u32 s76, s76, {WS_GO}
    v_cndmask_b32 v3, v165, v164, vcc
    v_not_b32 v3, v3
    buffer_store_dword v3, v2, {S(sWS,4)}, s76 offen sc1
    L_nogo:
    s_mov_b64 exec, -1""")
    stamp("signalled")
    e("L_nosig:\ns_barrier\ns_barrier\ns_barrier")
    byq(95,L_CH)
    e("L_B_gen:")
    wo_patterns(130)
    e(f"s_cmp_eq_u32 {S(sConv)}, 0\ns_cbranch_scc1 L_B_noaddr")
    conv_addr(); conv7_addr()
    e("L_B_noaddr:\ns_setprio 3\ns_barrier")
    e("s_cmp_eq_u32 s101, 0\ns_cbranch_scc1 L_B_nou")
    u_dma()
    e("L_B_nou:")
    stage_dma(1)
    e(f"s_cmp_eq_u32 {S(sConv)}, 0\ns_cbranch_scc1 L_B_plain")
    e(f"s_cmp_eq_u32 {S(sQ)}, 3\ns_cbranch_scc1 L_B7")
    expand_write()
    e("s_waitcnt vmcnt(11)"); u_patch()
    e(f"""v_mov_b32 v2, {L_FLAG+12}
    v_mov_b32 v3, 1
    s_waitcnt lgkmcnt(0)
    ds_add_u32 v2, v3
    s_setprio {OPT['bprio']}""")
    stamp("conv_start")
    c0,c1=OPT['c0'],OPT['c1']
    def flow(cv,pub,tag):
        cv(c0); stamp("seg0_done"+tag)
        e("s_waitcnt vmcnt(0)\ns_barrier")
        stage_dma(2); wo_prefetch(); cv(c1); stamp("seg1_done"+tag)
        e("s_waitcnt vmcnt(0)\ns_barrier")
        stage_dma(3); cv(8-c0-c1); e("s_setprio 3"); pub(); stamp("seg2_done"+tag)
    flow(conv,lambda: y_publish(False),"")
    e("s_branch L_B_sig\nL_B7:")
    lds_spin("L_spin7",L_FLAG+12,3*64); e(f"s_setprio {OPT['bprio']}")
    flow(conv7,lambda: y_publish(True),"7")
    e("L_B_sig:")
    y_signal()
    e("s_barrier\ns_branch L_B_wo\nL_B_plain:")
    e("s_waitcnt vmcnt(0)\ns_barrier"); stage_dma(2); wo_prefetch()
    e("s_waitcnt vmcnt(0)\ns_barrier"); stage_dma(3)
    e("s_waitcnt vmcnt(0)\ns_barrier")
    e("L_B_wo:")
    lds=lambda st: (L_R[0]+5120*st if st<4 else RG[0]+5120*(st-4) if st<10 else L_R[0]+20480+5120*(st-10) if st<14 else RG[0]+30720 if st==14 else RG[1]+5120*(st-15))
    for k,steps in enumerate(([0,1,2,3],[10,11,12,13],[4,5,6,7],[14,15,16,17],[8,9,18,19])):
        byq(78,steps); byq(79,[lds(x) for x in steps]); wo_piece(130,78,79)
    stamp("wo_issued")
    y_consume()
    stamp("seg3_done")
    e("s_barrier")
    if OPT['stamp']: e("s_waitcnt vmcnt(0)"); stamp("end"); stamp_dump()
    e("s_endpgm")
    e("L_codeend:")
def q_proj_patch():
    n0=len(L); q_proj()
    for i in range(n0,len(L)):
        if L[i].strip()=="s_barrier":
            L[i]="    s_waitcnt vmcnt(0)\n    s_barrier"; break
main()
L[:]=[y for x in L for y in x.split("\n")]
hdr=open("cdna_kernels/"+NAME+".s.ref").read().split("; Override launch")[0]
out=hdr+f"""; @launch grid=(256,1,1) block=(768,1,1) lds={LDS_SIZE}
.amdgcn_target "amdgcn-amd-amdhsa--gfx950"
.text
.globl {NAME}_kernel
.p2align 8
.type {NAME}_kernel,@function
{NAME}_kernel:
"""+"\n".join(L)+f"""
    s_endpgm
.section .rodata,"a"
.p2align 6
.amdhsa_kernel {NAME}_kernel
  .amdhsa_next_free_vgpr 168
  .amdhsa_next_free_sgpr 102
  .amdhsa_accum_offset 168
  .amdhsa_group_segment_fixed_size 0
  .amdhsa_kernarg_size 120
  .amdhsa_user_sgpr_count 2
  .amdhsa_user_sgpr_kernarg_segment_ptr 1
  .amdhsa_system_sgpr_workgroup_id_x 1
  .amdhsa_float_denorm_mode_32 3
.end_amdhsa_kernel
"""
path=sys.argv[1] if len(sys.argv)>1 else "cdna_kernels/"+NAME+".s"
open(path,"w").write(out)
errs=hz.check(L,"lin")
for a,b in [] : pass
for x in sorted(set(errs)): print("HAZARD",x)
if OPT['stamp']: open(path+".stamps","w").write("\n".join(STAMPS))
print("lines",len(L))
```

```python
import sys, math, struct
import hz
NAME="concat_heads__grouped_kv_mqa__ssm_conv_s4d__prompt"
OPT=dict(stamp=0, force_fb=0, c0=2, c1=3, pa=0, bprio=0, p0=0,p1=4,p2=10,p3=16, late1=1, wrot=1, sl=2, nosig=0, pre=0, noust=0, kp=0, pg=0, late0=0, ackpos=1, q2=0, qsl=0, qp=2, upre=1, himask=0, upad=256, touch=1, ust=0, fast=1, gom=0)
for a in sys.argv[2:]:
    k,v=a.split('='); OPT[k]=int(v)
L=[]; LOOPS=[]; STAMPS=[]
def e(s):
    for x in s.split('\n'):
        x=x.strip()
        if x: L.append(('    ' if not x.endswith(':') else '')+x)
def V(a,n=1): return f"v{a}" if n==1 else f"v[{a}:{a+n-1}]"
def S(a,n=1): return f"s{a}" if n==1 else f"s[{a}:{a+n-1}]"
def nop(n):
    while n>0:
        k=min(n,16); e(f"s_nop {k-1}"); n-=k
def fb(x): return "%#x"%struct.unpack('<I',struct.pack('<f',x))[0]
WS_UT0=256; WS_GO=0x2F0000; UTP=4096+OPT['upad']; WS_KV=0x500000; WS_ST=0x580000; WS_OF=0x582000; WS_XI=0x583000; WS_YC=0x584000; WS_YG=0x584800; WS_YT=0x980000; WS_O=0x600000; WS_STAMP=0x880000; WS_SIZE=0xD00000
TILE=2688; VF0=1024; VF1=1728; K2O=2432; HST=8*TILE
SLOT=[0,40960,81920]; WQO=16384
L_WK=81920; L_X8=133120; L_UT=137216; L_STG3=147776
L_R=[81920,0]; RG=[43008,124928]; CHP=17536
L_CH=[RG[0],RG[0]+CHP,RG[1],RG[0]]
L_YC=RG[1]+25600
L_KG=150784; NCONV=214
UCP=4576; ROFF=9152; RCP=4224; KGP=4096
L_QX=124928; QXP=3072
L_FBX=78848; L_KB=163072; L_FLAG=163328
LDS_SIZE=163840
GU=94
sX,sWQ,sWKV,sWO,sU,sWS,sOUT,sDBG=36,40,44,48,52,56,60,64
sWv,sQ,sB,sRB,sHG,sRot,sConv,sCI=68,69,70,71,72,73,74,75
sLoop,sSpin,sKC,sBb=96,97,98,99
sRole=100
vL16=1
Qa1,Qa2,Qb1,Qb2=10,14,16,20
vN,vOA0,vOA1,vOA2=22,23,24,25
vKV=[26,27]; vK2=[28,29]; vVa=[30,31]
vLA,vAI,vCR,vCI,vLDT,vD=10,11,12,13,14,15
vP10=9

def stamp(name):
    if not OPT['stamp']: return
    if name not in STAMPS: STAMPS.append(name)
    e(f"s_memrealtime s[92:93]\ns_waitcnt lgkmcnt(0)\nv_writelane_b32 v167, s92, {STAMPS.index(name)}")
def stamp_dyn(name,n,reg,down):
    if OPT['stamp']<2: return
    if name+"0" not in STAMPS:
        for k in range(n): STAMPS.append(name+str(k))
    i=STAMPS.index(name+"0")
    e(f"s_sub_u32 s94, {i+down}, s{reg}")
    e(f"s_memrealtime s[92:93]\ns_mov_b32 m0, s94\ns_waitcnt lgkmcnt(0)\nv_writelane_b32 v167, s92, m0")
def stamp_dump():
    if not OPT['stamp']: return
    e(f"""s_mul_i32 s94, s2, 12
    s_add_u32 s94, s94, {S(sWv)}
    s_lshl_b32 s94, s94, 8
    s_add_u32 s94, s94, {WS_STAMP}
    s_mov_b64 exec, -1
    v_lshlrev_b32 v166, 2, v0
    buffer_store_dword v167, v166, {S(sWS,4)}, s94 offen""")
def srd(s, p, nbytes):
    e(f"s_mov_b32 s{s}, s{p}\ns_mov_b32 s{s+1}, s{p+1}\ns_mov_b32 s{s+2}, {nbytes}\ns_mov_b32 s{s+3}, 0x20000")
def dma(vaddr, srd_, soff, sc1=False):
    e(f"buffer_load_dwordx4 {V(vaddr)}, {S(srd_,4)}, {soff} offen {'sc1 ' if sc1 else ''}lds")
def selb(dst,vals):
    return f"s_mul_i32 s{dst}, {S(sB)}, {vals[1]-vals[0]}\ns_add_u32 s{dst}, s{dst}, {vals[0]}"
def byq(dst,vals):
    e(f"s_mov_b32 s{dst}, {vals[0]}")
    for k in (1,2,3): e(f"s_cmp_eq_u32 {S(sQ)}, {k}\ns_cselect_b32 s{dst}, {vals[k]}, s{dst}")
def div10(dst,src): e(f"v_mul_u32_u24 {V(dst)}, 0x199a, {V(src)}\nv_lshrrev_b32 {V(dst)}, 16, {V(dst)}")
def loop_end(lab,b0):
    e(f"s_sub_u32 s{sLoop}, s{sLoop}, 1\ns_cmp_lg_u32 s{sLoop}, 0\ns_cbranch_scc1 {lab}")
    LOOPS.append((b0,len(L)))

def entry():
    e("s_cmp_ge_u32 s2, 256\ns_cbranch_scc1 L_exit")
    e("s_load_dwordx16 s[4:19], s[0:1], 0\ns_load_dwordx8 s[20:27], s[0:1], 64\ns_load_dwordx4 s[28:31], s[0:1], 96\ns_load_dwordx2 s[32:33], s[0:1], 112")
    e("s_getpc_b64 s[34:35]\nL_pc:")
    e(f"v_lshrrev_b32 v2, 6, v0\nv_and_b32 v0, 63, v0\nv_readfirstlane_b32 {S(sWv)}, v2")
    e(f"s_lshr_b32 s76, s2, 3\ns_and_b32 s77, s2, 7")
    e(f"s_cmp_lg_u32 {S(sWv)}, 3\ns_cbranch_scc1 L_nopf")
    e(f"s_lshl_b32 s78, s76, 11\nv_and_b32 v2, 15, v0\nv_lshlrev_b32 v2, 7, v2\nv_add_u32 v2, s78, v2\nv_min_u32 v2, L_codeend-L_pc-4, v2\nglobal_load_dword v163, v2, s[34:35]")
    e("L_nopf:")
    e(f"""s_and_b32 {S(sQ)}, {S(sWv)}, 3
    s_lshr_b32 {S(sRole)}, {S(sWv)}, 2
    s_and_b32 {S(sB)}, {S(sRole)}, 1
    s_and_b32 s78, s76, 3
    s_lshl_b32 s79, s77, 2
    s_add_u32 {S(sRB)}, s79, s78
    s_lshr_b32 {S(sHG)}, s76, 2
    s_lshl_b32 s78, s78, 1
    s_add_u32 s78, s78, {S(sHG)}
    s_mul_i32 s79, s78, 52
    s_lshr_b32 s79, s79, 8
    s_mul_i32 s79, s79, 5
    s_sub_u32 {S(sRot)}, s78, s79
    s_lshl_b32 s79, {S(sHG)}, 5
    s_add_u32 {S(sCI)}, s79, {S(sRB)}
    s_cmp_lt_u32 {S(sCI)}, {NCONV}
    s_cselect_b32 {S(sConv)}, 1, 0
    v_lshlrev_b32 {V(vL16)}, 4, v0
    s_cmp_eq_u32 {S(sRole)}, 2
    s_cbranch_scc1 L_B0
    s_cmp_lg_u32 {S(sWv)}, 0
    s_cbranch_scc1 L_noflaginit
    v_lshlrev_b32 v2, 2, v0
    v_add_u32 v2, {L_FLAG}, v2
    v_mov_b32 v3, 0
    ds_write_b32 v2, v3
    L_noflaginit:
    s_and_b32 s78, {S(sWv)}, 1
    s_lshl_b32 s79, s78, 2
    v_lshrrev_b32 v5, 4, v0
    v_add_u32 v6, s79, v5
    v_lshlrev_b32 v7, 1, v6
    v_and_b32 v8, 15, v0
    v_xor_b32 v7, v7, v8
    v_lshlrev_b32 v7, 4, v7
    v_mul_u32_u24 v6, 1280, v6
    v_add_u32 v4, v6, v7
    s_lshr_b32 s85, s2, 3
    s_mul_i32 s85, s85, {3*OPT['wrot']}
    s_add_u32 s85, s85, {S(sQ)}""")
    for k in range(4): e("s_cmp_ge_u32 s85, 25\ns_cselect_b32 s84, 25, 0\ns_sub_u32 s85, s85, s84")
    e(f"""s_waitcnt lgkmcnt(0)
    s_cmp_eq_u32 {S(sB)}, 0
    s_cselect_b32 s{sWKV}, s8, s10
    s_cselect_b32 s{sWKV+1}, s9, s11
    s_mov_b32 s{sWKV+2}, 25600
    s_mov_b32 s{sWKV+3}, 0x20000
    s_cselect_b32 s82, 0, 25600
    s_add_u32 s82, s82, {L_WK}""")
    srd(sX,4,2621440)
    e(f"""s_lshl_b32 s80, {S(sRB)}, 3
    s_add_u32 s80, s80, {S(sHG)}
    s_mul_i32 s80, s80, 10240
    s_lshr_b32 s83, {S(sWv)}, 1
    s_lshl_b32 s84, s83, 8
    s_add_u32 s84, s84, s80
    s_lshl_b32 s83, s83, 11
    s_lshl_b32 s81, s78, 10
    s_add_u32 s83, s83, s81
    s_add_u32 m0, s83, {L_X8}
    s_nop 0""")
    dma(4,sX,"s84")
    e(f"s_cmp_ge_u32 {S(sWv)}, 2\ns_cbranch_scc1 L_nox8b\ns_add_u32 m0, s81, {L_X8+4*2048}\ns_add_u32 s84, s80, 1024")
    dma(4,sX,"s84"); e("L_nox8b:")
    for m in range(7):
        if m==6: e(f"s_cmp_lg_u32 {S(sQ)}, 0\ns_cbranch_scc1 L_nowk7")
        e(f"s_lshl_b32 s84, s85, 10\ns_add_u32 m0, s84, s82\ns_add_u32 s85, s85, 4"); dma(vL16,sWKV,"s84")
        if m<6: e("s_cmp_ge_u32 s85, 25\ns_cselect_b32 s84, 25, 0\ns_sub_u32 s85, s85, s84")
    e("L_nowk7:")
    srd(sWS,32,WS_SIZE); srd(sWQ,6,819200)

vXA=100; vWA=108; vXd=109; vWd=160
sXo,sWo,sSl=86,87,90
def chunk_addr():
    e(f"""s_lshl_b32 s76, {S(sQ)}, 2
    v_lshrrev_b32 v2, 4, v0
    v_add_u32 v2, s76, v2
    v_and_b32 v3, 15, v0
    v_xor_b32 v3, v3, v2
    v_lshlrev_b32 v3, 4, v3
    v_mul_u32_u24 v2, 1280, v2
    v_add_u32 {V(vXd)}, v2, v3""")
    for p in range(3):
        e(f"""v_add_u32 v2, {64*p}, v0
        v_mul_u32_u24 v3, 0x1556, v2
        v_lshrrev_b32 v3, 16, v3
        v_mul_u32_u24 v4, 12, v3
        v_sub_u32 v4, v2, v4
        v_lshlrev_b32 v4, 4, v4
        v_mul_u32_u24 v3, 1280, v3
        v_add_u32 {V(vWd+p)}, v3, v4""")
    e(f"""s_mul_i32 s88, {S(sRB)}, 81920
    s_mul_i32 s89, {S(sHG)}, 160
    s_and_b32 s89, s89, 0xffffffc0
    s_mul_i32 s76, {S(sQ)}, 40960
    s_add_u32 s89, s89, s76
    s_mov_b32 s{sKC}, {S(sRot)}""")
def chunk_next(): e(f"s_add_u32 s{sKC}, s{sKC}, 1\ns_cmp_eq_u32 s{sKC}, 5\ns_cselect_b32 s{sKC}, 0, s{sKC}")
def chunk_dma(slot):
    e(f"""s_lshl_b32 s{sXo}, s{sKC}, 8
    s_add_u32 s{sXo}, s{sXo}, s88
    s_mul_i32 s{sWo}, s{sKC}, 163840
    s_add_u32 s{sWo}, s{sWo}, s89
    s_lshl_b32 s{sSl}, {S(sQ)}, 10
    s_mul_i32 s{sSl+1}, {S(sQ)}, 6144""")
    chunk_next()
    for m in range(4):
        e(f"s_add_u32 m0, s{sSl}, {slot+4096*m}\ns_add_u32 s84, s{sXo}, {m*16*1280}"); dma(vXd,sX,"s84")
    for g2 in range(2):
        for p in range(3):
            e(f"s_add_u32 m0, s{sSl+1}, {slot+WQO+3072*g2+1024*p}\ns_add_u32 s84, s{sWo}, {g2*16*1280}"); dma(vWd+p,sWQ,"s84")

def attn_addr():
    e(selb(76,(L_R[0],L_R[0]+HST))); e(selb(77,(L_R[1],L_R[1]+HST)))
    e(f"""v_add_u32 {V(vKV[0])}, s76, {V(vL16)}
    v_add_u32 {V(vKV[1])}, s77, {V(vL16)}
    v_and_b32 v4, 31, v0
    v_lshlrev_b32 v5, 3, v4
    v_add_u32 v5, {K2O}, v5
    v_add_u32 {V(vK2[0])}, s76, v5
    v_add_u32 {V(vK2[1])}, s77, v5
    v_lshrrev_b32 v2, 5, v0
    v_min_u32 v3, 21, v4
    v_mul_u32_u24 v5, 22, v2
    v_add_u32 v3, v3, v5
    v_lshlrev_b32 v3, 4, v3
    v_add_u32 v3, {VF0}, v3
    v_add_u32 {V(vVa[0])}, s76, v3
    v_add_u32 {V(vVa[1])}, s77, v3""")
    e(f"""s_mul_i32 s76, {S(sHG)}, 20
    s_and_b32 s77, {S(sQ)}, 1
    s_mul_i32 s77, s77, 10
    s_add_u32 s76, s76, s77
    s_mul_i32 s77, {S(sB)}, 5
    s_add_u32 s76, s76, s77
    s_mul_i32 s77, {S(sRB)}, 81920
    s_lshr_b32 s78, {S(sQ)}, 1
    s_mul_i32 s78, s78, 40960
    s_add_u32 s77, s77, s78
    s_add_u32 s77, s77, {WS_O}
    v_lshrrev_b32 v5, 4, v4
    v_mul_u32_u24 v5, 20480, v5
    v_and_b32 v6, 15, v0
    v_lshlrev_b32 v6, 4, v6
    v_add_u32 v5, v5, v6
    v_add_u32 v5, s77, v5""")
    for dst,add,useh in ((vOA0,0,1),(vOA1,2,1),(vOA2,4,0)):
        e(f"s_add_u32 s78, s76, {add}")
        e("v_add_u32 v6, s78, v2" if useh else "v_mov_b32 v6, s78")
        e(f"""v_lshrrev_b32 v7, 3, v6
        v_lshlrev_b32 v7, 10, v7
        v_bfe_u32 v8, v6, 2, 1
        v_lshlrev_b32 v8, 9, v8
        v_add_u32 v7, v7, v8
        v_and_b32 v8, 1, v6
        v_lshlrev_b32 v8, 8, v8
        v_add_u32 v7, v7, v8
        v_bfe_u32 v8, v6, 1, 1
        v_lshlrev_b32 v8, 3, v8
        v_add3_u32 {V(dst)}, v7, v8, v5""")
    e(f"v_cmp_gt_u32 vcc, 32, v0\nv_mov_b32 v7, 0x7fffffff\ns_nop 0\nv_cndmask_b32 {V(vOA2)}, v7, {V(vOA2)}, vcc")

def qproj_addr():
    e(f"""s_lshr_b32 s76, {S(sQ)}, 1
    s_lshl_b32 s76, s76, 5
    v_and_b32 v2, 31, v0
    v_add_u32 v2, s76, v2
    v_lshrrev_b32 v3, 5, v0
    v_and_b32 v4, 15, v2
    v_xor_b32 v4, v4, v3
    v_lshlrev_b32 v4, 4, v4
    v_lshlrev_b32 v2, 8, v2
    v_add_u32 {V(vXA)}, v2, v4""")
    for st in range(1,8): e(f"v_xor_b32 {V(vXA+st)}, {32*st}, {V(vXA)}")
    e(f"""s_and_b32 s76, {S(sHG)}, 1
    s_lshl_b32 s76, s76, 5
    s_and_b32 s77, {S(sQ)}, 1
    s_mul_i32 s77, s77, 80
    s_add_u32 s76, s76, s77
    s_add_u32 s76, s76, {WQO}
    v_lshlrev_b32 v3, 3, v3
    v_bfe_u32 v4, v0, 2, 2
    v_add_u32 v3, v3, v4
    v_mul_u32_u24 v3, 192, v3
    v_bfe_u32 v4, v0, 4, 1
    v_lshlrev_b32 v4, 5, v4
    v_add_u32 v3, v3, v4
    v_and_b32 v4, 3, v0
    v_lshlrev_b32 v4, 3, v4
    v_add3_u32 {V(vWA)}, v3, v4, s76""")
def q_proj():
    accA,accB=32,48; F=[64,76,88]
    def reads(st):
        b=F[st%3]
        return [f"ds_read_b128 {V(b,4)}, {V(vXA+st)}",
                f"ds_read_b64_tr_b16 {V(b+4,2)}, {V(vWA)} offset:{st*3072}",
                f"ds_read_b64_tr_b16 {V(b+6,2)}, {V(vWA)} offset:{st*3072+768}",
                f"ds_read_b64_tr_b16 {V(b+8,2)}, {V(vWA)} offset:{st*3072+40}",
                f"ds_read_b64_tr_b16 {V(b+10,2)}, {V(vWA)} offset:{st*3072+808}"]
    e(f"s_mov_b32 s{sLoop}, 5\ns_mov_b32 s79, 0\nv_mov_b32 v6, {L_FLAG+32}\nv_mov_b32 v7, 1\ns_branch L_qspin0\nL_qp:")
    b0=len(L)
    for x in reads(0)+reads(1): e(x)
    for st in range(8):
        if st+2<8:
            for x in reads(st+2): e(x)
        e(f"s_waitcnt lgkmcnt({5*min(2,7-st)})")
        b=F[st%3]
        e(f"v_mfma_f32_32x32x16_bf16 {V(accA,16)}, {V(b+4,4)}, {V(b,4)}, {V(accA,16)}")
        e(f"v_mfma_f32_32x32x16_bf16 {V(accB,16)}, {V(b+8,4)}, {V(b,4)}, {V(accB,16)}")
    e(f"""s_sub_u32 s{sLoop}, s{sLoop}, 1
    s_cmp_eq_u32 s{sLoop}, 0
    s_cbranch_scc1 L_qp_end
    s_mov_b64 exec, 1
    ds_add_u32 v6, v7 offset:32
    s_cmp_lt_u32 s{sLoop}, {3 if OPT['q2'] else 4}
    s_cbranch_scc1 L_qp_noown
    s_cmp_eq_u32 s{sLoop}, 4
    s_cbranch_scc1 L_qp_w10
    s_waitcnt vmcnt(0)
    L_qp_w10:
    s_waitcnt vmcnt({10 if OPT['q2'] else 0})
    ds_add_u32 v6, v7 offset:4
    L_qp_noown:
    s_mov_b64 exec, -1
    v_add_u32 v6, 4, v6
    s_add_u32 s78, s79, 40960
    s_cmp_eq_u32 s78, 122880
    s_cselect_b32 s78, 0, s78
    s_sub_u32 s77, s78, s79
    s_mov_b32 s79, s78""")
    for k in range(9): e(f"v_add_u32 {V(vXA+k)}, s77, {V(vXA+k)}")
    stamp_dyn("qp_done",4,sLoop,4)
    e(f"""L_qspin0:
    s_mov_b32 s{sSpin}, 0
    L_qspin:
    ds_read_b32 v2, v6
    s_add_u32 s{sSpin}, s{sSpin}, 1
    s_cmp_gt_u32 s{sSpin}, 0x1000000
    s_cbranch_scc1 L_qp
    s_waitcnt lgkmcnt(0)
    v_cmp_gt_u32 vcc, 4, v2
    s_cbranch_vccz L_qp
    {'s_sleep 1' if OPT['qsl'] else ''}
    s_branch L_qspin""")
    LOOPS.append((b0,len(L)))
    e("L_qp_end:")
    e(f"s_mov_b32 s76, {fb(20**-0.5*math.log2(math.e))}\nv_cmp_gt_u32 vcc, 32, v0"); nop(11)
    for acc,q1,q2,n in ((accA,Qa1,Qa2,2),(accB,Qb1,Qb2,3)):
        for i in range(12): e(f"v_mul_f32 v{acc+i}, s76, v{acc+i}")
        for i in range(8,12): e(f"v_cndmask_b32 v{acc+i}, 0, v{acc+i}, vcc")
        for i in range(4): e(f"v_cvt_pk_bf16_f32 v{q1+i}, v{acc+2*i}, v{acc+2*i+1}")
        for i in range(2): e(f"v_cvt_pk_bf16_f32 v{q2+i}, v{acc+8+2*i}, v{acc+9+2*i}")
        if acc==accB:
            e(f"""ds_write_b128 v8, v[10:13]
            ds_write_b128 v8, v[14:17] offset:1024
            ds_write_b128 v8, v[18:21] offset:2048""")
        e(f"v_mul_f32 v{n}, v{acc}, v{acc}")
        for i in range(1,12): e(f"v_fmac_f32 v{n}, v{acc+i}, v{acc+i}")
    e(f"v_max_u32 v2, v2, v3")
    for sh in (1,2,4,8): e(f"s_nop 1\nv_max_u32_dpp v2, v2, v2 row_ror:{sh} row_mask:0xf bank_mask:0xf")
    for op in ("v_permlane16_swap_b32","v_permlane32_swap_b32"): e(f"v_mov_b32 v3, v2\ns_nop 1\n{op} v2, v3\ns_nop 1\nv_max_u32 v2, v2, v3")
    e(f"s_lshl_b32 s76, {S(sQ)}, 2\ns_add_u32 s76, s76, {L_KB+16}\nv_mov_b32 v3, s76\nds_write_b32 v3, v2\ns_waitcnt lgkmcnt(0)")

def u_addr():
    byq(76,[L_KG,L_KG+KGP,L_KG+2*KGP,L_STG3])
    e(f"""v_lshrrev_b32 v2, 4, v0
    v_and_b32 v3, 3, v0
    v_bfe_u32 v4, v0, 2, 2
    v_lshlrev_b32 v5, 4, v2
    v_lshlrev_b32 v6, 2, v3
    v_add3_u32 v5, v5, v6, v4
    v_mul_u32_u24 v5, 160, v5
    s_mul_i32 s77, {S(sQ)}, 40
    s_add_u32 s77, s77, {L_UT}
    v_add_u32 v128, s77, v5
    v_xor_b32 v5, v2, v3
    v_lshlrev_b32 v5, 5, v5
    v_lshlrev_b32 v6, 7, v3
    v_lshlrev_b32 v7, 3, v4
    v_add3_u32 v5, v5, v6, v7
    v_add_u32 v129, s76, v5
    v_bfe_u32 v2, v0, 3, 2
    v_bfe_u32 v3, v0, 1, 2
    v_xor_b32 v3, v3, v2
    v_lshlrev_b32 v3, 5, v3
    v_and_b32 v4, 1, v0
    v_lshlrev_b32 v4, 4, v4
    v_lshlrev_b32 v5, 7, v2
    v_add3_u32 v3, v3, v4, v5
    v_lshrrev_b32 v4, 5, v0
    v_lshlrev_b32 v5, 9, v4
    v_add3_u32 v130, v3, v5, s76
    v_lshrrev_b32 v2, 3, v0
    v_mul_u32_u24 v2, {UTP}, v2
    v_and_b32 v3, 7, v0
    v_lshlrev_b32 v3, 4, v3
    v_add_u32 v131, v2, v3
    s_mul_i32 s76, {S(sHG)}, 80
    s_mul_i32 s77, {S(sQ)}, 20
    s_add_u32 s76, s76, s77
    s_mul_i32 s76, s76, {UTP}
    s_lshl_b32 s77, {S(sRB)}, 7
    s_add_u32 s77, s77, s76
    s_add_u32 s86, s77, {WS_UT0}""")
def u_tile_dma(tag):
    lds_spin("L_spinF"+tag,L_FLAG+56,4)
    div10(2,0)
    e(f"""v_mul_u32_u24 v3, 10, v2
    v_sub_u32 v3, v0, v3
    v_lshlrev_b32 v3, 4, v3
    v_mul_u32_u24 v2, 1280, v2
    v_add_u32 v2, v2, v3
    s_mul_i32 s80, {S(sRB)}, 81920
    s_mul_i32 s81, {S(sHG)}, 160
    s_add_u32 s80, s80, s81
    s_mul_i32 s81, {S(sQ)}, {4*7680}
    s_add_u32 s80, s80, s81
    s_mul_i32 s82, {S(sQ)}, {4*960}
    s_mov_b32 exec_hi, 0x0fffffff""")
    for i in range(4):
        if i==3: e(f"s_cmp_eq_u32 {S(sQ)}, 2\ns_cbranch_scc1 L_ut3{tag}")
        e(f"s_add_u32 m0, s82, {L_UT+960*i}\ns_add_u32 s81, s80, {7680*i}"); dma(2,sU,"s81")
    e(f"L_ut3{tag}:\ns_mov_b32 exec_hi, -1")
un=[0]
def u_part():
    lds_spin(f"L_spinU{un[0]}",L_FLAG+60,3); un[0]+=1
    for k in range(5): e(f"ds_read_b64_tr_b16 {V(104+2*k,2)}, v128 offset:{8*k}")
    for k in range(5):
        e(f"s_waitcnt lgkmcnt(4)" if k<4 else "s_waitcnt lgkmcnt(6)")
        e(f"ds_write_b64 v129, {V(104+2*k,2)} offset:{512*k if k<4 else 0}")
        if k==3: e(f"ds_read_b128 v[116:119], v130\nds_read_b128 v[120:123], v130 offset:1024")
    e("ds_read_b128 v[124:127], v130")
    for k in range(3):
        e(f"s_waitcnt lgkmcnt({(2,2,0)[k]})")
        if k==2: e("s_mov_b32 exec_hi, 0")
        e(f"s_add_u32 s78, s86, {8*k*UTP}\nbuffer_store_dwordx4 {V(116+4*k,4)}, v131, {S(sWS,4)}, s78 offen sc1")
    e("s_mov_b32 exec_hi, -1")

def kv_addr():
    e(f"""s_lshr_b32 s76, {S(sQ)}, 1
    s_mul_i32 s76, s76, 25600
    s_and_b32 s77, {S(sQ)}, 1
    s_lshl_b32 s77, s77, 5
    s_add_u32 s76, s76, s77
    s_add_u32 s76, s76, {L_WK}
    v_lshrrev_b32 v2, 4, v0
    v_lshlrev_b32 v3, 3, v2
    v_bfe_u32 v4, v0, 2, 2
    v_add_u32 v3, v3, v4
    v_mul_u32_u24 v3, 40, v3
    v_and_b32 v4, 3, v0
    v_lshlrev_b32 v4, 3, v4
    v_add3_u32 v72, v3, v4, s76
    v_and_b32 v3, 7, v0
    v_lshlrev_b32 v4, 1, v3
    v_xor_b32 v4, v4, v2
    v_lshlrev_b32 v4, 4, v4
    v_lshlrev_b32 v3, 8, v3
    v_add_u32 v3, v3, v4
    v_add_u32 v73, {L_X8}, v3
    v_xor_b32 v74, 64, v73
    v_xor_b32 v75, 0x80, v73
    v_xor_b32 v76, 0xc0, v73
    s_lshl_b32 s76, {S(sRB)}, 1
    s_lshr_b32 s77, {S(sHG)}, 2
    s_add_u32 s76, s76, s77
    s_mul_i32 s76, s76, {TILE}
    s_add_u32 s76, s76, {WS_KV}
    s_and_b32 s77, {S(sHG)}, 3
    v_and_b32 v3, 15, v0
    s_cmp_ge_u32 {S(sQ)}, 2
    s_cbranch_scc1 L_kva_v
    s_lshl_b32 s78, s77, 3
    v_add_u32 v3, s78, v3
    s_cmp_eq_u32 {S(sQ)}, 1
    s_cbranch_scc1 L_kva_k1
    v_and_b32 v4, 1, v2
    v_lshlrev_b32 v4, 5, v4
    v_add_u32 v3, v3, v4
    v_lshlrev_b32 v3, 4, v3
    v_lshrrev_b32 v4, 1, v2
    v_lshlrev_b32 v4, 3, v4
    v_add3_u32 v77, v3, v4, s76
    s_mov_b32 s80, 0x00ff00ff
    s_mov_b32 s81, 0x00ff00ff
    s_mov_b64 s[82:83], s[80:81]
    s_branch L_kva_done
    L_kva_k1:
    v_lshlrev_b32 v3, 3, v3
    s_add_u32 s76, s76, {K2O}
    v_add_u32 v77, s76, v3
    s_mov_b32 s80, 0xff
    s_mov_b32 s81, 0
    s_mov_b64 s[82:83], s[80:81]
    s_branch L_kva_done
    L_kva_v:
    s_and_b32 s78, {S(sQ)}, 1
    s_lshl_b32 s79, s78, 4
    v_add_u32 v3, s79, v3
    v_mul_u32_u24 v4, 22, v2
    v_add_u32 v3, v3, v4
    v_lshlrev_b32 v3, 4, v3
    s_lshr_b32 s79, s77, 1
    s_mul_i32 s79, s79, {VF1-VF0}
    s_add_u32 s76, s76, s79
    s_and_b32 s79, s77, 1
    s_lshl_b32 s79, s79, 3
    s_add_u32 s76, s76, s79
    s_add_u32 s76, s76, {VF0}
    v_add_u32 v77, s76, v3
    s_cmp_eq_u32 s78, 0
    s_cselect_b32 s80, -1, 0x003f003f
    s_mov_b32 s81, 0
    s_cselect_b32 s82, -1, 0x000f000f
    s_mov_b32 s83, 0
    L_kva_done:""")
    for i in range(32,36): e(f"v_mov_b32 v{i}, 0")
def kv_proj():
    def reads(u):
        b=40+8*(u%4) if False else 112+8*(u%5)
        e(f"ds_read_b64_tr_b16 {V(b,2)}, v72 offset:{u*1280}\nds_read_b64_tr_b16 {V(b+2,2)}, v72 offset:{u*1280+160}\nds_read_b128 {V(b+4,4)}, {V(73+(u&3))} offset:{2048*(u>>2)}")
    def body(swap):
        for u in range(20):
            b=112+8*(u%5); a,c=(b+4,b) if swap else (b,b+4)
            e(f"s_waitcnt lgkmcnt({3*min(4,19-u)})\nv_mfma_f32_16x16x32_bf16 v[32:35], {V(a,4)}, {V(c,4)}, v[32:35]")
            if u+5<20: reads(u+5)
    for u in range(5): reads(u)
    e(f"s_cmp_ge_u32 {S(sQ)}, 2\ns_cbranch_scc1 L_kvV")
    body(False); e("s_branch L_kvE\nL_kvV:"); body(True); e("L_kvE:")
    e("s_waitcnt lgkmcnt(0)")
    lds_inc(L_FLAG+56)
    stamp("kv_loop")
    e(f"""v_and_b32 v2, 15, v0
    v_cmp_eq_u32 vcc, 4, v2
    v_mov_b32 v3, 0x3f803f80
    s_nop 2
    v_cndmask_b32 v3, 0, v3, vcc
    v_cvt_pk_bf16_f32 v40, v32, v33
    v_cvt_pk_bf16_f32 v41, v34, v35
    v_mul_f32 v42, v32, v32
    v_cndmask_b32 v40, v3, v40, s[82:83]
    v_cndmask_b32 v41, v3, v41, s[82:83]
    s_mov_b64 exec, s[80:81]
    buffer_store_dwordx2 v[40:41], v77, {S(sWS,4)}, 0 offen sc1
    s_mov_b64 exec, -1
    v_fmac_f32 v42, v33, v33
    v_fmac_f32 v42, v34, v34
    v_fmac_f32 v42, v35, v35
    v_cndmask_b32 v42, 0, v42, s[82:83]
    v_mov_b32 v43, v42
    s_lshl_b32 s76, s2, 4
    s_lshl_b32 s77, {S(sQ)}, 2
    v_permlane32_swap_b32 v42, v43
    s_add_u32 s76, s76, s77
    s_add_u32 s76, s76, {WS_ST}
    v_add_f32 v42, v42, v43
    v_mov_b32 v43, v42
    s_nop 1
    v_permlane16_swap_b32 v42, v43
    s_nop 1
    v_add_f32 v42, v42, v43""")
    for sh in (1,2,4,8): e(f"s_nop 1\nv_max_u32_dpp v42, v42, v42 row_ror:{sh} row_mask:0xf bank_mask:0xf")
    e(f"""v_mov_b32 v2, 0
    s_mov_b64 exec, 1
    buffer_store_dword v42, v2, {S(sWS,4)}, s76 offen sc1
    s_lshl_b32 s76, {S(sRB)}, 6
    s_lshl_b32 s77, {S(sHG)}, 2
    s_add_u32 s76, s76, s77
    s_add_u32 s76, s76, {WS_OF}
    buffer_store_dword v2, v2, {S(sWS,4)}, s76 offen sc1
    s_getreg_b32 s77, hwreg(HW_REG_XCC_ID)
    s_add_u32 s76, s76, {WS_XI-WS_OF}
    v_mov_b32 v3, s77
    buffer_store_dword v3, v2, {S(sWS,4)}, s76 offen sc1
    s_cmp_ge_u32 s2, 16
    s_cbranch_scc1 L_noyr
    s_lshl_b32 s76, s2, 8
    s_add_u32 s76, s76, {WS_YC}
    buffer_store_dword v2, v2, {S(sWS,4)}, s76 offen sc1
    L_noyr:
    s_mov_b64 exec, -1""")

def poll(lab,vaddr,srd_,soff,want):
    e(f"""s_mov_b32 s{sSpin}, 0
    {lab}:
    buffer_load_dword v3, {V(vaddr)}, {S(srd_,4)}, {soff} offen sc1
    s_add_u32 s{sSpin}, s{sSpin}, 1
    s_cmp_gt_u32 s{sSpin}, 0x40000
    s_cbranch_scc1 {lab}_done
    s_waitcnt vmcnt(0)
    v_cmp_gt_u32 vcc, {want}, v3
    s_cbranch_vccz {lab}_done
    s_sleep {OPT['sl']}
    s_branch {lab}
    {lab}_done:""")
def lds_spin(lab,addr,want):
    e(f"""s_mov_b32 s{sSpin}, 0
    v_mov_b32 v2, {addr}
    {lab}:
    ds_read_b32 v3, v2
    s_add_u32 s{sSpin}, s{sSpin}, 1
    s_cmp_gt_u32 s{sSpin}, 0x1000000
    s_cbranch_scc1 {lab}_done
    s_waitcnt lgkmcnt(0)
    v_cmp_gt_u32 vcc, {want}, v3
    s_cbranch_vccz {lab}_done
    s_sleep 1
    s_branch {lab}
    {lab}_done:""")
def stage_dma(stage):
    slot=L_R[stage&1]
    for m in range(11):
        e(f"s_add_u32 s84, {S(sQ)}, {4*m}")
        if m==10: e("s_min_u32 s84, s84, 41")
        if 4*m+3<21: e(f"s_lshl_b32 s84, s84, 10\ns_add_u32 m0, s84, {slot}\ns_add_u32 s84, s84, {WS_KV+stage*HST}")
        elif 4*m>=21: e(f"s_lshl_b32 s84, s84, 10\ns_add_u32 m0, s84, {slot}\ns_add_u32 s84, s84, {WS_KV+stage*HST+32*TILE-HST}")
        else: e(f"s_cmp_ge_u32 s84, 21\ns_cselect_b32 s85, {32*TILE-HST}, 0\ns_lshl_b32 s84, s84, 10\ns_add_u32 m0, s84, {slot}\ns_add_u32 s84, s84, s85\ns_add_u32 s84, s84, {WS_KV+stage*HST}")
        dma(vL16,sWS,"s84",sc1=True)
def stage_all():
    e(f"""s_and_b32 s88, s{sSt}, 1
    s_mul_i32 s88, s88, {L_R[1]-L_R[0]}
    s_add_u32 s88, s88, {L_R[0]}
    s_mul_i32 s89, s{sSt}, {HST}
    s_add_u32 s89, s89, {WS_KV}""")
    for m in range(11):
        e(f"s_add_u32 s84, {S(sQ)}, {4*m}")
        if m==10: e("s_min_u32 s84, s84, 41")
        if 4*m+3<21: e(f"s_lshl_b32 s84, s84, 10\ns_add_u32 m0, s84, s88\ns_add_u32 s84, s84, s89")
        elif 4*m>=21: e(f"s_lshl_b32 s84, s84, 10\ns_add_u32 m0, s84, s88\ns_add_u32 s84, s84, s89\ns_add_u32 s84, s84, {32*TILE-HST}")
        else: e(f"s_cmp_ge_u32 s84, 21\ns_cselect_b32 s85, {32*TILE-HST}, 0\ns_lshl_b32 s84, s84, 10\ns_add_u32 m0, s84, s88\ns_add_u32 s84, s84, s85\ns_add_u32 s84, s84, s89")
        dma(vL16,sWS,"s84",sc1=True)
sSt,sPend=98,99
svc=[0]
def service(block=False):
    n=svc[0]; svc[0]+=1
    e(f"""L_sv{n}:
    s_cmp_eq_u32 s{sPend}, 0
    s_cbranch_scc1 L_sv{n}_a
    s_waitcnt vmcnt(0)
    s_mov_b64 exec, 1
    ds_add_u32 v8, v9
    s_mov_b64 exec, -1
    v_add_u32 v8, 4, v8
    s_waitcnt lgkmcnt(0)
    s_add_u32 s{sSt}, s{sSt}, 1
    s_mov_b32 s{sPend}, 0
    L_sv{n}_a:
    s_cmp_gt_u32 s{sSt}, 3
    s_cbranch_scc1 L_sv{n}_z
    ds_read_b32 v3, v8 offset:8
    s_waitcnt lgkmcnt(0)
    v_cmp_gt_u32 vcc, 8, v3
    s_cbranch_vccnz L_sv{n}_n
    s_getpc_b64 s[90:91]
    s_add_u32 s90, s90, 12
    s_addc_u32 s91, s91, 0
    s_branch L_stage_all
    s_mov_b32 s{sPend}, 1
    L_sv{n}_n:""")
    if block: e(f"s_add_u32 s{sSpin}, s{sSpin}, 1\ns_cmp_gt_u32 s{sSpin}, 0x1000000\ns_cbranch_scc1 L_sv{n}_z\ns_sleep 1\ns_branch L_sv{n}")
    e(f"L_sv{n}_z:")
def stats_load():
    for i in range(4): e(f"s_mov_b32 s76, {WS_ST+1024*i}\nbuffer_load_dwordx4 {V(32+4*i,4)}, {V(vL16)}, {S(sWS,4)}, s76 offen sc1")
def xcc_load():
    e(f"s_lshl_b32 s76, {S(sRB)}, 6\ns_add_u32 s76, s76, {WS_XI}\nv_and_b32 v2, 7, v0\nv_lshlrev_b32 v2, 2, v2\nbuffer_load_dword v48, v2, {S(sWS,4)}, s76 offen sc1")
def xcc_reduce():
    e(f"""s_getreg_b32 s77, hwreg(HW_REG_XCC_ID)
    v_cmp_ne_u32 vcc, s77, v48
    v_mov_b32 v2, {L_KB+4}
    s_nop 0
    s_cmp_eq_u64 vcc, 0
    s_cselect_b32 s77, {OPT['fast']}, 0
    v_mov_b32 v3, s77
    ds_write_b32 v2, v3""")
def stats_reduce():
    e("v_max_u32 v32, v32, v36\nv_max_u32 v40, v40, v44\nv_max_u32 v33, v33, v37\nv_max_u32 v41, v41, v45")
    e("v_max3_u32 v34, v34, v35, v38\nv_max3_u32 v42, v42, v43, v39\nv_max3_u32 v34, v34, v46, v47")
    e("v_max_u32 v32, v32, v40\nv_max_u32 v33, v33, v41\nv_max_u32 v34, v34, v42")
    for sh in (1,2,4,8):
        e("s_nop 0")
        for r in (32,33,34): e(f"v_max_u32_dpp v{r}, v{r}, v{r} row_ror:{sh} row_mask:0xf bank_mask:0xf")
    for op in ("v_permlane16_swap_b32","v_permlane32_swap_b32"):
        e("v_mov_b32 v36, v32\nv_mov_b32 v37, v33\nv_mov_b32 v38, v34\ns_nop 1")
        e(f"{op} v32, v36\n{op} v33, v37\n{op} v34, v38\ns_nop 1")
        e("v_max_u32 v32, v32, v36\nv_max_u32 v33, v33, v37\nv_max_u32 v34, v34, v38")
    e(f"""v_add_f32 v32, v32, v33
    s_mov_b32 s77, 0x67800000
    v_cmp_nle_f32 vcc, v34, s77
    v_mov_b32 v33, 0x7f800000
    v_mov_b32 v2, {L_KB}
    v_cndmask_b32 v32, v32, v33, vcc
    ds_write_b32 v2, v32""")

D0,GB,ZA=16,28,44
z1,z16,z256,z512,z768,z1024,cur,cu2,tmp=60,62,64,66,68,70,72,74,76
ZE=78; CV=136; vKGw,vKGr,a2,b2,vDT,Cp=96,97,98,99,100,102
def cmul(d,a,b):
    assert d!=a and d!=b
    e(f"v_pk_mul_f32 {V(d,2)}, {V(a,2)}, {V(b,2)} op_sel:[0,0] op_sel_hi:[1,0]")
    e(f"v_pk_fma_f32 {V(d,2)}, {V(a,2)}, {V(b,2)}, {V(d,2)} op_sel:[1,1,0] op_sel_hi:[0,1,1] neg_lo:[0,1,0]")
LOG2E=0x3fb8aa3b; INV2PI=0x3e22f983
def rne_bf16(dst,src): e(f"v_cvt_pk_bf16_f32 {V(dst)}, {V(src)}, {V(src)}\nv_and_b32 {V(dst)}, 0xffff0000, {V(dst)}")
def kgen_dt():
    e(f"v_lshlrev_b32 v2, 16, {V(vLDT)}\nv_mul_f32 v2, {LOG2E:#x}, v2\nv_exp_f32 v2, v2\ns_nop 0")
    rne_bf16(vDT,2)
    e(f"""s_mul_i32 s95, {S(sQ)}, {KGP}
    s_add_u32 s95, s95, {L_KG}
    v_lshlrev_b32 v2, 6, v0
    v_bfe_u32 v3, v0, 1, 2
    v_lshlrev_b32 v3, 4, v3
    v_add3_u32 {V(vKGw)}, v2, v3, s95
    v_xor_b32 v156, 16, {V(vKGw)}
    v_xor_b32 v157, 32, {V(vKGw)}
    v_xor_b32 v158, 48, {V(vKGw)}
    v_lshrrev_b32 v2, 2, v0
    v_bfe_u32 v3, v0, 3, 2
    v_bfe_u32 v4, v0, 1, 1
    v_xor_b32 v3, v3, v4
    v_lshlrev_b32 v3, 4, v3
    v_lshlrev_b32 v2, 6, v2
    v_and_b32 v4, 1, v0
    v_lshlrev_b32 v4, 3, v4
    v_add3_u32 v2, v2, v3, v4
    v_add_u32 {V(vKGr)}, s95, v2
    v_xor_b32 v159, 32, {V(vKGr)}""")
    for i in range(12): e(f"v_mov_b32 v{D0+i}, 0")
def kgen_setup():
    e(f"""v_and_b32 v2, 0xffff0000, {V(vLA)}
    v_and_b32 v3, 0xffff0000, {V(vAI)}
    v_and_b32 v4, 0xffff0000, {V(vCR)}
    v_and_b32 v5, 0xffff0000, {V(vCI)}
    v_mul_f32 v2, {LOG2E:#x}, v2
    v_exp_f32 v2, v2
    v_mul_f32 v3, v3, {V(vDT)}
    v_add_f32 v6, {V(vDT)}, {V(vDT)}""")
    rne_bf16(2,2)
    e(f"""v_mul_f32 {V(b2)}, {INV2PI:#x}, v3
    v_mul_f32 v2, v2, {V(vDT)}
    v_mul_f32 {V(Cp)}, v4, v6
    v_mul_f32 {V(a2)}, {LOG2E^0x80000000:#x}, v2
    v_mul_f32 {V(Cp+1)}, v5, v6""")
    for r in (vLA,vAI,vCR,vCI): e(f"v_lshlrev_b32 {V(r)}, 16, {V(r)}")
    for z,p in ((z1,1.0),(z16,16.0),(z256,256.0)):
        e(f"""v_mul_f32 v2, {fb(p)}, {V(a2)}
        v_mul_f32 v3, {fb(p)}, {V(b2)}
        v_exp_f32 v2, v2
        v_fract_f32 v3, v3
        v_cos_f32 v4, v3
        v_sin_f32 v5, v3
        s_nop 0
        v_mul_f32 {V(z)}, v2, v4
        v_mul_f32 {V(z+1)}, v2, v5""")
cvi=[0]
def put2(row,za,zb,neg=False):
    base=CV+8*((row>>3)&1); k=(row>>1)&3; ng='-' if neg else ''
    if za is None: e(f"v_cvt_pk_bf16_f32 {V(base+k)}, 1.0, {V(zb)}\nv_cvt_pk_bf16_f32 {V(base+4+k)}, 0, {V(zb+1)}")
    else: e(f"v_cvt_pk_bf16_f32 {V(base+k)}, {V(za)}, {V(zb)}\nv_cvt_pk_bf16_f32 {V(base+4+k)}, {ng}{V(za+1)}, {ng}{V(zb+1)}")
    if k==3:
        wr_,wi_=(vKGw,157) if row<8 else (156,158)
        e(f"ds_write_b128 {V(wr_)}, {V(base,4)}\nds_write_b128 {V(wi_)}, {V(base+4,4)}")
def tile_reads(dst):
    for s_ in range(4): e(f"ds_read_b64_tr_b16 {V(dst+4*s_,2)}, {V(vKGr)} offset:{1024*s_}\nds_read_b64_tr_b16 {V(dst+4*s_+2,2)}, v159 offset:{1024*s_}")
def tile_mf(D):
    for s_ in range(4): e(f"s_waitcnt lgkmcnt({6-2*s_})\nv_mfma_f32_16x16x32_bf16 {V(D,4)}, {V(ZA+4*s_,4)}, {V(GB+4*s_,4)}, {V(D,4)}")
Zk=lambda k: ZE+(k-2)
def kB():
    p=Cp
    for j in range(1,16):
        n=cur if (j&1) else cu2
        cmul(n,p,z16)
        if j&1: put2(j-1,p,n,True)
        p=n
    stamp_dyn("kgBw",2,sLoop,2)
    tile_reads(GB)
def kA0():
    put2(0,None,z1); p=z1
    for ee in range(2,16):
        n = ZE+(ee-2) if ee%2==0 else cur
        cmul(n,p,z1)
        if ee&1: put2(ee-1,p,n)
        p=n
    stamp_dyn("kgA0w",2,sLoop,2)
    tile_reads(ZA)
    cmul(z512,z256,z256); cmul(z768,z512,z256); cmul(z1024,z512,z512)
    tile_mf(D0)
    stamp_dyn("kgA0m",2,sLoop,2)
def kA12(more,mid=None):
    Z=Zk; p=z256
    for k in range(1,8):
        n=cur if (k&1) else cu2
        cmul(n,z256,Z(2*k))
        if k&1: put2(k-1,p,n)
        p=n
    for base,z in ((8,z512),(12,z768)):
        cmul(cur,z,Z(4)); put2(base,z,cur)
        cmul(cu2,z,Z(8)); cmul(cur,z,Z(12)); put2(base+2,cu2,cur)
    tile_reads(ZA)
    if mid: mid()
    cmul(cur,z1024,Z(8)); put2(0,z1024,cur)
    cmul(Cp,z1024,z512); cmul(cu2,z1024,z256); cmul(z1,z1024,z768)
    cmul(cur,cu2,Z(8)); put2(2,cu2,cur)
    tile_mf(D0+4)
    stamp_dyn("kgA1m",2,sLoop,2)
    cmul(cur,Cp,Z(8)); put2(4,Cp,cur)
    cmul(cur,z1,Z(8)); cmul(tmp,z1,z16); put2(6,z1,cur)
    e(f"v_cvt_pk_bf16_f32 {V(CV+8)}, {V(tmp)}, {V(tmp)}\nv_cvt_pk_bf16_f32 {V(CV+9)}, {V(tmp+1)}, {V(tmp+1)}")
    e(f"ds_write_b32 v156, {V(CV+8)}\nds_write_b32 v158, {V(CV+9)}")
    tile_reads(ZA)
    if more: kgen_setup()
    tile_mf(D0+8)
    stamp_dyn("kgA2m",2,sLoop,2)
def lds_inc(addr):
    e(f"v_mov_b32 v2, {addr}\nv_mov_b32 v3, 1\ns_mov_b64 exec, 1\nds_add_u32 v2, v3\ns_mov_b64 exec, -1")
def acked():
    e(f"v_mov_b32 v2, {L_FLAG+20}\nv_mov_b32 v3, 1\ns_mov_b64 exec, 1\nds_add_u32 v2, v3\ns_mov_b64 exec, -1")
def kgen_finish():
    d=D0
    e(f"""v_and_b32 v2, 15, v0
    v_lshrrev_b32 v3, 4, v0
    v_cmp_gt_u32 vcc, 32, v0
    v_lshlrev_b32 v4, 4, v2
    v_lshlrev_b32 v5, 3, v3
    v_add_u32 v4, v4, v5
    v_lshlrev_b32 v5, 7, v3
    v_lshlrev_b32 v6, 3, v2
    v_add_u32 v5, v5, v6
    v_cndmask_b32 v4, v5, v4, vcc
    v_add_u32 v4, s95, v4
    v_lshlrev_b32 v5, 7, v3
    v_lshlrev_b32 v6, 2, v2
    v_add3_u32 v5, v5, v6, s95
    v_lshlrev_b32 v6, 16, {V(vD)}
    v_cmp_eq_u32 s[78:79], 0, v0
    v_lshlrev_b32 v8, 2, v0
    v_add_u32 v8, s95, v8
    v_cndmask_b32 v6, 0, v6, s[78:79]
    v_add_f32 v{d}, v{d}, v6
    v_cvt_pk_bf16_f32 v110, v{d+3}, v{d+2}
    v_cvt_pk_bf16_f32 v111, v{d+1}, v{d}
    v_cvt_pk_bf16_f32 v28, v{d+4}, v{d+5}
    v_cvt_pk_bf16_f32 v29, v{d+6}, v{d+7}
    v_cvt_pk_bf16_f32 v30, v{d+8}, v{d+9}
    v_cvt_pk_bf16_f32 v31, v{d+10}, v{d+11}
    v_mov_b32 v7, s95
    ds_write_b64 v4, v[28:29]
    s_mov_b64 exec, vcc
    ds_write2_b32 v5, v30, v31 offset0:128 offset1:144
    s_mov_b32 exec_lo, 0
    s_mov_b32 exec_hi, 0x8000
    ds_write_b32 v7, v30 offset:768
    s_mov_b64 exec, -1
    ds_read2_b32 v[104:105], v8 offset0:0 offset1:1
    ds_read2_b32 v[106:107], v8 offset0:64 offset1:65
    ds_read2_b32 v[108:109], v8 offset0:128 offset1:129
    s_waitcnt lgkmcnt(0)""")
def chan(dst,breg=None,b=None):
    e(f"s_mul_i32 s{dst}, {S(sCI)}, 3")
    e(f"s_add_u32 s{dst}, s{dst}, {S(breg) if breg is not None else b}\ns_min_u32 s{dst}, s{dst}, 639")
def u_dma():
    chan(77,sQ)
    e(f"s_mul_i32 s77, s77, {UTP}")
    for rho in (1,0):
        for i in range(4):
            e(f"s_add_u32 m0, s95, {rho*UCP+448+1024*i}\ns_add_u32 s78, s77, {WS_UT0-(2 if rho==0 else 0)+1024*i}"); dma(vL16,sWS,"s78",sc1=True)
def expand_pre():
    R1=RCP-4
    e(f"""s_add_u32 s76, s95, {ROFF}
    s_mov_b32 s77, 0x01000100
    s_mov_b32 s78, 0x03020302
    s_mov_b32 s79, 0x03020504
    s_mov_b32 s81, 0x01000302
    v_and_b32 v2, 15, v0
    v_lshlrev_b32 v2, 5, v2
    v_lshrrev_b32 v3, 4, v0
    v_lshlrev_b32 v3, 3, v3
    v_add_u32 v2, v2, v3
    s_add_u32 s82, s76, 4088
    v_sub_u32 v140, s82, v2
    v_lshlrev_b32 v3, 3, v0
    s_add_u32 s82, s76, 4088-512
    v_sub_u32 v141, s82, v3
    s_add_u32 s82, s76, 3056
    v_sub_u32 v142, s82, {V(vL16)}
    v_lshlrev_b32 v5, 5, v0
    s_add_u32 s82, s76, 2016
    v_sub_u32 v143, s82, v5
    v_perm_b32 v112, v105, v104, s79
    v_perm_b32 v113, v104, v104, s77
    v_perm_b32 v116, v107, v107, s77
    v_perm_b32 v117, v106, v106, s78
    v_perm_b32 v118, v106, v106, s81
    v_perm_b32 v119, v106, v106, s77
    v_perm_b32 v120, v109, v109, s77
    v_perm_b32 v121, v109, v109, s77
    v_perm_b32 v122, v108, v108, s78
    v_perm_b32 v123, v108, v108, s78
    v_perm_b32 v124, v108, v108, s78
    v_perm_b32 v125, v108, v108, s81
    v_perm_b32 v126, v108, v108, s77
    v_perm_b32 v127, v108, v108, s77
    v_add_u32 v144, {R1}, v140
    v_add_u32 v145, {R1}, v141
    v_add_u32 v146, {R1}, v142
    v_add_u32 v147, {R1}, v143
    v_mov_b32 v152, 0
    v_mov_b32 v153, 0
    v_mov_b32 v154, 0
    v_mov_b32 v155, 0
    v_lshlrev_b32 v2, 2, v0
    v_add_u32 v148, s76, v2
    v_lshrrev_b32 v3, 5, v0
    v_mul_u32_u24 v3, {UCP-512}, v3
    v_add3_u32 v149, v3, {V(vL16)}, s95
    v_mov_b32 v150, s95""")
def expand_write():
    e(f"""ds_write_b64 v140, v[110:111]
    ds_write_b64 v141, v[112:113]
    ds_write_b128 v142, v[116:119]
    ds_write_b128 v143, v[120:123]
    ds_write_b128 v143, v[124:127] offset:16
    ds_write2_b32 v144, v110, v111 offset0:0 offset1:1
    ds_write2_b32 v145, v112, v113 offset0:0 offset1:1
    ds_write2_b32 v146, v116, v117 offset0:0 offset1:1
    ds_write2_b32 v146, v118, v119 offset0:2 offset1:3
    ds_write2_b32 v147, v120, v121 offset0:0 offset1:1
    ds_write2_b32 v147, v122, v123 offset0:2 offset1:3
    ds_write2_b32 v147, v124, v125 offset0:4 offset1:5
    ds_write2_b32 v147, v126, v127 offset0:6 offset1:7
    s_mov_b32 exec_hi, 0
    s_mov_b32 exec_lo, 0xffff
    ds_write_b32 v148, v152 offset:4096
    ds_write_b32 v148, v152 offset:{RCP+4092}
    s_mov_b32 exec_lo, 0x0fffffff
    s_mov_b32 exec_hi, 0x0fffffff
    ds_write_b128 v149, v[152:155]
    s_mov_b64 exec, -1""")
def u_patch():
    e("s_mov_b64 exec, 1\nds_write_b16 v150, v152 offset:448\ns_mov_b64 exec, -1")
cACC,cU,cK,vUa,vKa=16,48,80,10,11
def conv_addr():
    e(f"""v_and_b32 v2, 1, v0
    v_mul_u32_u24 v3, {UCP}, v2
    v_bfe_u32 v4, v0, 1, 3
    v_lshlrev_b32 v4, 6, v4
    v_lshrrev_b32 v5, 4, v0
    v_lshlrev_b32 v5, 4, v5
    v_add3_u32 v3, v3, v4, v5
    s_add_u32 s78, s95, 448
    v_add_u32 {V(vUa)}, s78, v3
    v_and_b32 v3, 15, v0
    v_lshlrev_b32 v3, 2, v3
    v_sub_u32 v3, v5, v3
    v_mul_u32_u24 v2, {RCP-4}, v2
    v_sub_u32 v3, v3, v2
    s_add_u32 s78, s95, {ROFF+4092-3584+RCP-4}
    v_add_u32 {V(vKa)}, s78, v3""")
    for i in range(36): e(f"v_mov_b32 v{cACC+i}, 0")
cnum=[0]
def conv(n):
    SETS=[(36,68),(100,132)]
    def rd(st):
        U,K=SETS[st]; r=[]
        for m in (0,3,1,2,4,5,6,7):
            r+=[f"ds_read_b64 {V(K+4*m,2)}, {V(vKa)} offset:{512*(7-m)}",f"ds_read_b64 {V(K+4*m+2,2)}, {V(vKa)} offset:{512*(7-m)+8}",f"ds_read_b128 {V(U+4*m,4)}, {V(vUa)} offset:{512*m}"]
        r.append(f"v_add_u32 {V(vKa)}, -64, {V(vKa)}\nv_add_u32 {V(vUa)}, -64, {V(vUa)}")
        return r
    for x in rd(0): e(x)
    e(f"s_mov_b32 s{sLoop}, 4\nL_cv:"); b0=len(L)
    order=sorted([(ii,m) for ii in range(8) for m in range(8-ii) if ii+m>=3], key=lambda p:(max(p),p))
    assert len(order)==30
    for st in range(2):
        U,K=SETS[st]; nx=rd(1-st); k=0
        e("s_waitcnt lgkmcnt(0)")
        for n_,(ii,m) in enumerate(order):
            c=ii+m-3
            e(f"v_mfma_f32_16x16x32_bf16 {V(cACC+4*c,4)}, {V(U+4*m,4)}, {V(K+4*ii,4)}, {V(cACC+4*c,4)}")
            if k<len(nx): e(nx[k]); k+=1
        service()
    loop_end("L_cv",b0)
    e("s_waitcnt lgkmcnt(0)")
def conv7():
    SETS=[(52,64),(76,88)]
    def rd(ch,st):
        U,K=SETS[st]; r=[]
        ua,ka=(vUa,vKa) if ch<2 else (12,13); d=CHP if ch==1 else 0
        for m in range(3):
            r+=[f"ds_read_b64 {V(K+4*m,2)}, {V(ka)} offset:{d+512*(7-m)}",f"ds_read_b64 {V(K+4*m+2,2)}, {V(ka)} offset:{d+512*(7-m)+8}",f"ds_read_b128 {V(U+4*m,4)}, {V(ua)} offset:{d+512*m}"]
        if ch==1: r.append(f"v_add_u32 {V(vKa)}, -64, {V(vKa)}\nv_add_u32 {V(vUa)}, -64, {V(vUa)}")
        if ch==2: r.append("v_add_u32 v12, -64, v12\nv_add_u32 v13, -64, v13")
        return r
    for x in rd(0,0): e(x)
    e(f"s_mov_b32 s{sLoop}, 4\nL_cv7:"); b0=len(L)
    for u in range(6):
        ch=u%3; st=u&1; U,K=SETS[st]; nx=rd((u+1)%3,1-st); k=0
        e("s_waitcnt lgkmcnt(0)")
        for ii in range(3):
            for m in range(3-ii):
                a=cACC+12*ch+4*(ii+m)
                e(f"v_mfma_f32_16x16x32_bf16 {V(a,4)}, {V(U+4*m,4)}, {V(K+4*ii,4)}, {V(a,4)}")
                for x in nx[k:k+3]: e(x)
                k+=3
        assert k>=len(nx)
        if ch==2: service()
    loop_end("L_cv7",b0)
    e("s_waitcnt lgkmcnt(0)")
def conv7_addr():
    d=L_CH[2]-L_CH[0]
    e(f"v_add_u32 v12, {d}, {V(vUa)}\nv_add_u32 v13, {d}, {V(vKa)}")
def y_publish(seven):
    e(f"""v_lshrrev_b32 v2, 4, v0
    v_lshlrev_b32 v2, 7, v2
    v_and_b32 v3, 15, v0
    v_lshlrev_b32 v3, 2, v3
    v_add_u32 v2, v2, v3""")
    if not seven:
        chan(76,sQ); e(f"s_mul_i32 s76, s76, {UTP}\ns_add_u32 s76, s76, {WS_YT}")
    nop(4)
    for c in range(9 if seven else 5):
        t0=60+2*c
        e(f"v_cvt_pk_bf16_f32 v{t0}, v{cACC+4*c}, v{cACC+4*c+1}\nv_cvt_pk_bf16_f32 v{t0+1}, v{cACC+4*c+2}, v{cACC+4*c+3}")
        if seven and c%3==0: chan(76,None,c//3); e(f"s_mul_i32 s76, s76, {UTP}\ns_add_u32 s76, s76, {WS_YT}")
        o=512*(c%3) if seven else 512*(c+3)
        e(f"buffer_store_dword v{t0}, v2, {S(sWS,4)}, s76 offen offset:{o} sc1\nbuffer_store_dword v{t0+1}, v2, {S(sWS,4)}, s76 offen offset:{o+64} sc1")
def y_signal():
    e(f"""s_waitcnt vmcnt(0)
    v_mov_b32 v2, {L_FLAG+8}
    v_mov_b32 v3, 1
    s_mov_b64 exec, 1
    ds_add_rtn_u32 v4, v2, v3
    s_waitcnt lgkmcnt(0)
    v_readfirstlane_b32 s76, v4
    s_nop 1
    s_cmp_lg_u32 s76, 3
    s_cbranch_scc1 L_noysig""")
    chan(76,None,0); chan(77,None,2)
    e("""s_mul_i32 s76, s76, 52429
    s_lshr_b32 s76, s76, 22
    s_mul_i32 s77, s77, 52429
    s_lshr_b32 s77, s77, 22""")
    for k,g in enumerate((76,77)):
        if k==1: e("s_cmp_eq_u32 s76, s77\ns_cbranch_scc1 L_noysig")
        e(f"""s_lshl_b32 s78, s{g}, 8
        s_add_u32 s78, s78, {WS_YC}
        v_mov_b32 v2, 0
        v_mov_b32 v3, 1
        buffer_atomic_add v3, v2, {S(sWS,4)}, s78 offen sc0 sc1
        s_mul_i32 s79, s{g}, 80
        s_add_u32 s80, s79, 79
        s_mul_i32 s79, s79, 21846
        s_lshr_b32 s79, s79, 16
        s_mul_i32 s80, s80, 21846
        s_lshr_b32 s80, s80, 16
        s_sub_u32 s79, s80, s79
        s_waitcnt vmcnt(0)
        v_readfirstlane_b32 s80, v3
        s_nop 1
        s_cmp_lg_u32 s79, s80
        s_cbranch_scc1 L_noygo{k}
        s_add_u32 s78, s78, {WS_YG-WS_YC-2048*0}
        v_mov_b32 v3, 1
        buffer_store_dword v3, v2, {S(sWS,4)}, s78 offen sc1
        L_noygo{k}:""")
    e("L_noysig:\ns_mov_b64 exec, -1")
def y_consume():
    e(f"s_cmp_lg_u32 {S(sQ)}, 0\ns_cbranch_scc1 L_y_wait\ns_lshl_b32 s78, {S(sHG)}, 8\ns_add_u32 s78, s78, {WS_YG}\nv_mov_b32 v2, 0")
    poll("L_poll3",2,sWS,"s78",1)
    e(f"v_mov_b32 v2, {L_FLAG+16}\nv_mov_b32 v3, 1\nds_write_b32 v2, v3\ns_branch L_y_go\nL_y_wait:")
    lds_spin("L_spin3",L_FLAG+16,1)
    e("L_y_go:")
    stamp("y_polled")
    e(f"""s_mul_i32 s76, {S(sHG)}, {80*UTP}
    s_lshl_b32 s77, {S(sRB)}, 7
    s_add_u32 s76, s76, s77
    s_lshl_b32 s77, {S(sQ)}, 5
    s_add_u32 s76, s76, s77
    s_add_u32 s76, s76, {WS_YT}
    s_mul_i32 s77, {S(sQ)}, 2560
    s_add_u32 s77, s77, {L_YC}
    v_lshrrev_b32 v2, 1, v0
    v_mul_u32_u24 v2, {UTP}, v2
    v_and_b32 v3, 1, v0
    v_lshlrev_b32 v3, 4, v3
    v_add_u32 v2, v2, v3""")
    for i in range(3):
        if i==2: e("s_mov_b32 exec_hi, 0")
        e(f"s_add_u32 m0, s77, {1024*i}\ns_add_u32 s78, s76, {32*UTP*i}"); dma(2,sWS,"s78",sc1=True)
    e("s_mov_b32 exec_hi, -1")
    e(f"""v_lshrrev_b32 v2, 2, v0
    v_lshlrev_b32 v2, 5, v2
    v_and_b32 v3, 3, v0
    v_lshlrev_b32 v3, 3, v3
    v_add3_u32 v4, v2, v3, s77
    v_and_b32 v2, 15, v0
    v_mul_u32_u24 v2, 160, v2
    v_lshrrev_b32 v3, 4, v0
    v_lshlrev_b32 v3, 3, v3
    v_add3_u32 v5, v2, v3, s77
    v_add_u32 v6, s77, {V(vL16)}
    s_lshl_b32 s76, {S(sRB)}, 6
    s_lshl_b32 s78, {S(sQ)}, 4
    s_add_u32 s76, s76, s78
    s_mul_i32 s76, s76, 2560
    s_mul_i32 s78, {S(sHG)}, 160
    s_add_u32 s76, s76, s78
    s_add_u32 s76, s76, 1280""")
    for p in range(3):
        e(f"v_add_u32 v2, {64*p}, v0"); div10(3,2)
        e(f"v_mul_u32_u24 v3, 1280, v3\nv_add_u32 v{40+p}, v3, v{161+p}")
    e("s_waitcnt vmcnt(0)")
    for k in range(5): e(f"ds_read_b64_tr_b16 {V(16+2*k,2)}, v4 offset:{512*k}")
    e("s_waitcnt lgkmcnt(0)")
    for k in range(5): e(f"ds_write_b64 v5, {V(16+2*k,2)} offset:{32*k}")
    for p in range(3): e(f"ds_read_b128 {V(28+4*p,4)}, v6 offset:{1024*p}")
    for p in range(3):
        e(f"s_waitcnt lgkmcnt({2-p})")
        if p==2: e("s_mov_b32 exec_hi, 0")
        e(f"buffer_store_dwordx4 {V(28+4*p,4)}, v{40+p}, {S(sOUT,4)}, s76 offen")
    e("s_mov_b32 exec_hi, -1")
def wo_patterns(base):
    for p in range(5):
        e(f"v_add_u32 v2, {64*p}, v0"); div10(3,2)
        e(f"""v_mul_u32_u24 v4, 10, v3
        v_sub_u32 v4, v2, v4
        v_lshlrev_b32 v4, 4, v4
        v_mul_u32_u24 v3, 1280, v3
        v_add_u32 {V(base+p)}, v3, v4""")
def wo_prefetch():
    e(f"""s_lshr_b32 s84, s2, 3
    s_lshl_b32 s84, s84, 2
    s_add_u32 s84, s84, {S(sQ)}
    s_mul_i32 s84, s84, 6400
    v_lshlrev_b32 v2, 7, v0
    s_mov_b32 exec_hi, 0x3ffff
    buffer_load_dword v14, v2, {S(sWO,4)}, s84 offen
    s_mov_b32 exec_hi, -1""")
    if OPT['touch']:
        e(f"""s_mul_i32 s84, {S(sRB)}, 81920
        s_mul_i32 s85, {S(sHG)}, 10240
        s_add_u32 s84, s84, s85
        s_mul_i32 s85, {S(sQ)}, 2560
        s_add_u32 s84, s84, s85
        s_add_u32 s84, s84, {WS_O}
        s_mov_b32 exec_hi, 0
        s_mov_b32 exec_lo, 0xfffff
        buffer_load_dword v14, v2, {S(sWS,4)}, s84 offen
        s_mov_b64 exec, -1""")
def wo_piece(pat, step_expr_reg, lds_reg):
    e(f"s_mul_i32 s84, s{step_expr_reg}, {32*1280}\ns_mul_i32 s85, {S(sHG)}, 160\ns_add_u32 s84, s84, s85")
    for p in range(5):
        e(f"s_add_u32 m0, s{lds_reg}, {1024*p}\ns_nop 0"); dma(pat+p,sWO,"s84")

SA,SB,PA,PB,OA,OB,K1,K2=32,48,64,72,80,96,112,116
VB=[120,128]; NA,NB=136,152
def valu_half(Sv,Pv):
    ex=[f"v_exp_f32 v{Sv+i}, v{Sv+i}" for i in range(16)]
    c=[f"v_cvt_pk_bf16_f32 v{Pv+i}, v{Sv+2*i}, v{Sv+2*i+1}" for i in range(8)]
    return [ex[0],ex[1],ex[2],ex[3],ex[4],ex[5],c[0],ex[6],ex[7],c[1],ex[8],ex[9],c[2],ex[10],ex[11],c[3],ex[12],ex[13],c[4],ex[14],ex[15],c[5],c[6],c[7]]
def qk(Sm,q1,q2,C=None):
    return [f"v_mfma_f32_32x32x16_bf16 {V(Sm,16)}, {V(K1,4)}, {V(q1,4)}, {'0' if C is None else V(C,16)}",
            f"v_mfma_f32_32x32x8bf16_1k {V(Sm,16)}, {V(K2,2)}, {V(q2,2)}, {V(Sm,16)}"]
def pv(Om,Pm,Vb,first=False):
    return [f"v_mfma_f32_32x32x16_bf16 {V(Om,16)}, {V(Vb+4*i,4)}, {V(Pm+4*i,4)}, {'0' if (first and i==0) else V(Om,16)}" for i in range(2)]
def kreads(t):
    sl=(t>>3)&1; o=(t&7)*TILE
    return [f"ds_read_b128 {V(K1,4)}, {V(vKV[sl])} offset:{o}", f"ds_read_b64 {V(K2,2)}, {V(vK2[sl])} offset:{o}"]
def vreads(t):
    sl=(t>>3)&1; o=(t&7)*TILE
    return [f"ds_read_b128 {V(VB[t&1]+4*i,4)}, {V(vVa[sl])} offset:{o+i*(VF1-VF0)}" for i in range(2)]
POS=(OPT['p0'],OPT['p1'],OPT['p2'],OPT['p3'])
def phase(Sv,Pv,mf,after,pre):
    v=valu_half(Sv,Pv)
    for i in range(len(v)):
        for k,p in enumerate(POS):
            if p==i:
                if pre.get(k): e(pre[k])
                if mf[k]: e(mf[k])
                for x in after.get(k,[]): e(x)
        e(v[i])
RINGS=[]
def ring_stubs():
    for st in RINGS:
        e(f"""L_ring{st}:
        s_mov_b32 s{sSpin}, 0
        L_ring{st}_sp:
        ds_read_b32 v2, v8 offset:{4*(st+1)}
        s_add_u32 s{sSpin}, s{sSpin}, 1
        s_cmp_gt_u32 s{sSpin}, 0x1000000
        s_cbranch_scc1 L_ring{st}_ok
        s_waitcnt lgkmcnt(0)
        v_cmp_eq_u32 vcc, 4, v2
        s_cbranch_vccnz L_ring{st}_ok
        s_sleep 1
        s_branch L_ring{st}_sp""")
def attention():
    e(f"v_mov_b32 v8, {L_FLAG+96}\nv_mov_b32 v9, 1\ns_waitcnt lgkmcnt(0)")
    for x in qk(SA,Qa1,Qa2): e(x)
    nop(12)
    stamp("attn_start")
    for t in range(32):
        mf=qk(SB,Qb1,Qb2)+(pv(OB,PB,VB[(t-1)&1],t==1) if t>=1 else [None]*2)
        after={}; pre={}
        if t<31:
            kr=kreads(t+1); after[0]=[kr[0]]; after[1]=[kr[1]]
        if t in (7,15,23):
            st=t>>3
            after[0]=["s_waitcnt lgkmcnt(0)",f"s_mov_b64 exec, 1\nds_add_u32 v8, v9 offset:{16+4*st}\ns_mov_b64 exec, -1\nv_cmp_eq_u32 vcc, 4, v2\ns_cbranch_vccz L_ring{st}\nL_ring{st}_ok:"]+after[0]
            RINGS.append(st)
        if OPT['pa']==1: pre[0]=f"s_setprio {1+(t&1)}"
        g=OPT['pg']
        if g and t%g==0: pre[0]=f"s_cmp_eq_u32 {S(sB)}, {(t//g)&1}\ns_setprio 1\ns_cbranch_scc1 L_pr{t}\ns_setprio 2\nL_pr{t}:"
        if OPT['pa']==5: pre[0]="s_setprio 2"
        if OPT['pa']==2 and t%8==0: pre[0]=f"s_setprio {1+(((t>>3)&1))}"
        phase(SA,PA,mf,after,pre)
        mf=(qk(SA,Qa1,Qa2) if t<31 else [None]*2)+pv(OA,PA,VB[t&1],t==0)
        after={}; pre={}
        pre[0]="s_waitcnt lgkmcnt(0)"
        if OPT['pa']==5: pre[0]="s_setprio 1\n"+pre[0]
        if t<31:
            vr=vreads(t+1); after[0]=[vr[0]]; after[1]=[vr[1]]
            if t in (6,14,22): after[2]=[f"ds_read_b32 v2, v8 offset:{4*((t>>3)+1)}"]
        phase(SB,PB,mf,after,pre)
    nop(2)
    for x in pv(OB,PB,VB[1]): e(x)
def fallback():
    e("s_waitcnt lgkmcnt(0)")
    for k in range(3): lds_inc(L_FLAG+112+4*k)
    e(f"""s_mul_i32 s88, {S(sB)}, {32*TILE}
    s_add_u32 s88, s88, {WS_KV}
    v_and_b32 v3, 31, v0
    v_lshlrev_b32 v4, 3, v3
    v_lshrrev_b32 v2, 5, v0
    v_min_u32 v3, 21, v3
    v_mul_u32_u24 v2, 22, v2
    v_add_u32 v3, v3, v2
    v_lshlrev_b32 v5, 4, v3
    v_mov_b32 v6, 0xff800000
    v_mov_b32 v7, 0xff800000
    s_waitcnt lgkmcnt(0)""")
    def kload():
        e(f"buffer_load_dwordx4 {V(K1,4)}, {V(vL16)}, {S(sWS,4)}, s84 offen sc1\nbuffer_load_dwordx2 {V(K2,2)}, v4, {S(sWS,4)}, s84 offen offset:{K2O} sc1")
    e(f"s_mov_b32 s84, s88\ns_mov_b32 s{sLoop}, 32\nL_fb1:"); b0=len(L)
    kload(); e("s_waitcnt vmcnt(0)")
    for x in qk(SA,Qa1,Qa2)+qk(SB,Qb1,Qb2): e(x)
    nop(12)
    for Sm,r in ((SA,6),(SB,7)):
        for i in range(8): e(f"v_max3_f32 v{r}, v{r}, v{Sm+2*i}, v{Sm+2*i+1}")
    e(f"s_add_u32 s84, s84, {TILE}"); loop_end("L_fb1",b0)
    for r in (6,7): e(f"v_mov_b32 v8, v{r}\ns_nop 1\nv_permlane32_swap_b32 v{r}, v8\ns_nop 1\nv_max_f32 v{r}, v{r}, v8")
    e(f"""s_lshl_b32 s76, {S(sWv)}, 8
    s_add_u32 s77, s76, {L_FBX}
    v_add_u32 v3, s77, v4
    ds_write_b64 v3, v[6:7]
    s_xor_b32 s76, s76, 1024
    s_add_u32 s77, s76, {L_FBX}
    v_add_u32 v3, s77, v4
    v_mov_b32 v5, v3
    s_waitcnt lgkmcnt(0)""")
    lds_inc(L_FLAG+24); lds_spin("L_fbx",L_FLAG+24,8)
    e(f"""ds_read_b64 v[8:9], v5
    v_and_b32 v3, 31, v0
    v_lshrrev_b32 v2, 5, v0
    v_min_u32 v3, 21, v3
    v_mul_u32_u24 v2, 22, v2
    v_add_u32 v3, v3, v2
    v_lshlrev_b32 v5, 4, v3
    s_waitcnt lgkmcnt(0)
    v_max_f32 v6, v6, v8
    v_max_f32 v7, v7, v9""")
    for i in range(16): e(f"v_sub_f32 v{NA+i}, 0, v6\nv_sub_f32 v{NB+i}, 0, v7\nv_mov_b32 v{OA+i}, 0\nv_mov_b32 v{OB+i}, 0")
    e(f"s_mov_b32 s84, s88\ns_mov_b32 s{sLoop}, 32\nL_fb2:"); b0=len(L)
    kload()
    for i in range(2): e(f"buffer_load_dwordx4 {V(VB[0]+4*i,4)}, v5, {S(sWS,4)}, s84 offen offset:{VF0+i*(VF1-VF0)} sc1")
    e("s_waitcnt vmcnt(0)")
    for x in qk(SA,Qa1,Qa2,NA)+qk(SB,Qb1,Qb2,NB): e(x)
    nop(12)
    for Sm,Pm,Om in ((SA,PA,OA),(SB,PB,OB)):
        for x in valu_half(Sm,Pm): e(x)
        nop(2)
        for x in pv(Om,Pm,VB[0]): e(x)
    e(f"s_add_u32 s84, s84, {TILE}"); loop_end("L_fb2",b0)

def tail():
    EX=L_R[1]; OS=L_R[1]+24576
    e(f"s_cmp_eq_u32 {S(sB)}, 0\ns_cbranch_scc1 L_noswap"); nop(12)
    for i in range(12): e(f"v_swap_b32 v{OA+i}, v{OB+i}")
    e("L_noswap:")
    e(f"""s_mul_i32 s76, {S(sWv)}, 3072
    s_add_u32 s76, s76, {EX}
    v_add_u32 v2, s76, {V(vL16)}
    s_xor_b32 s77, {S(sWv)}, 4
    s_mul_i32 s77, s77, 3072
    s_add_u32 s77, s77, {EX}
    v_add_u32 v3, s77, {V(vL16)}"""); nop(5)
    e("s_barrier")
    stamp("f1")
    for i in range(3): e(f"ds_write_b128 v2, {V(OB+4*i,4)} offset:{1024*i}")
    e("s_waitcnt lgkmcnt(0)\ns_barrier")
    for i in range(3): e(f"ds_read_b128 {V(32+4*i,4)}, v3 offset:{1024*i}")
    e("s_waitcnt lgkmcnt(0)")
    e(f"v_add_f32 v{OA+8}, v{OA+8}, v40")
    for i in list(range(8))+[9,10,11]: e(f"v_add_f32 v{OA+i}, v{OA+i}, v{32+i}")
    e(f"v_mov_b32 v4, v{OA+8}\nv_mov_b32 v5, v{OA+8}\ns_nop 1\nv_permlane32_swap_b32 v4, v5\ns_nop 1\nv_rcp_f32 v5, v5\ns_nop 0")
    for i in range(12): e(f"v_mul_f32 v{OA+i}, v{OA+i}, v5")
    for i in range(6): e(f"v_cvt_pk_bf16_f32 v{32+i}, v{OA+2*i}, v{OA+2*i+1}")
    e("s_cmp_eq_u32 s101, 0\ns_cbranch_scc1 L_ost_far")
    for i,a in enumerate((vOA0,vOA1,vOA2)): e(f"buffer_store_dwordx2 {V(32+2*i,2)}, {V(a)}, {S(sWS,4)}, 0 offen")
    e("s_branch L_ost_j\nL_ost_far:")
    for i,a in enumerate((vOA0,vOA1,vOA2)): e(f"buffer_store_dwordx2 {V(32+2*i,2)}, {V(a)}, {S(sWS,4)}, 0 offen sc1")
    e("L_ost_j:")
    stamp("o_issue")
    WA,WB,WC,vOl,vOs,vOr,vOg,vFl=10,11,9,12,13,14,15,8
    e(selb(76,(L_R[0],L_R[0]+20480))); e(selb(77,(RG[0],RG[0]+30720))); e(selb(78,(RG[0]+5120,RG[1])))
    e(f"""v_lshrrev_b32 v2, 5, v0
    v_lshlrev_b32 v2, 4, v2
    v_bfe_u32 v3, v0, 4, 1
    v_lshlrev_b32 v3, 2, v3
    v_bfe_u32 v4, v0, 2, 2
    v_add3_u32 v2, v2, v3, v4
    v_mul_u32_u24 v2, 160, v2
    v_and_b32 v3, 3, v0
    v_lshlrev_b32 v3, 3, v3
    v_add3_u32 {V(WA)}, v2, v3, s76
    v_add3_u32 {V(WB)}, v2, v3, s77
    v_add3_u32 {V(WC)}, v2, v3, s78""")
    WF=56; OF=16; ACC=136
    def wr(sp,slot):
        base,o=(WA,sp*5120) if sp<4 else (WB,0) if sp==4 else (WC,(sp-5)*5120)
        r=[]
        for ct in range(5):
            b=WF+20*slot+4*ct
            r+=[f"ds_read_b64_tr_b16 {V(b,2)}, {V(base)} offset:{o+32*ct}", f"ds_read_b64_tr_b16 {V(b+2,2)}, {V(base)} offset:{o+32*ct+1280}"]
        return r
    e(f"""s_mul_i32 s76, {S(sRB)}, 81920
    s_mul_i32 s77, {S(sQ)}, 20480
    s_add_u32 s76, s76, s77
    s_mul_i32 s77, {S(sB)}, 10240
    s_add_u32 s76, s76, s77
    s_add_u32 s76, s76, {WS_O}
    v_add_u32 {V(vOl)}, s76, {V(vL16)}
    s_lshl_b32 s76, {S(sQ)}, 4
    v_and_b32 v2, 15, v0
    v_add_u32 v2, s76, v2
    v_mul_u32_u24 v2, 160, v2
    v_lshrrev_b32 v3, 4, v0
    v_lshlrev_b32 v3, 3, v3
    v_add_u32 v2, v2, v3
    v_add_u32 {V(vOs)}, {OS}, v2
    s_mul_i32 s76, {S(sWv)}, 960
    s_add_u32 s76, s76, {OS}
    v_add_u32 {V(vOr)}, s76, {V(vL16)}""")
    div10(2,0)
    e(f"""v_mul_u32_u24 v3, 10, v2
    v_sub_u32 v3, v0, v3
    v_lshlrev_b32 v3, 4, v3
    v_mul_u32_u24 v2, 2560, v2
    v_add_u32 {V(vOg)}, v2, v3
    v_and_b32 v2, 7, v0
    v_lshlrev_b32 {V(vFl)}, 2, v2""")
    e("s_waitcnt vmcnt(0)\ns_barrier")
    stamp("o_acked")
    e(f"""s_cmp_lg_u32 {S(sWv)}, 0
    s_cbranch_scc1 L_noflag
    s_lshl_b32 s76, {S(sRB)}, 6
    s_lshl_b32 s77, {S(sHG)}, 2
    s_add_u32 s76, s76, s77
    s_add_u32 s76, s76, {WS_OF}
    v_mov_b32 v2, 0
    v_mov_b32 v3, 1
    s_mov_b64 exec, 1
    s_cmp_eq_u32 s101, 0
    s_cbranch_scc1 L_ofl_far
    buffer_store_dword v3, v2, {S(sWS,4)}, s76 offen
    s_branch L_ofl_j
    L_ofl_far:
    buffer_store_dword v3, v2, {S(sWS,4)}, s76 offen sc1
    L_ofl_j:
    s_mov_b64 exec, -1
    L_noflag:""")
    for sp in range(4):
        for x in wr(sp,sp): e(x)
    e(f"s_cmp_lg_u32 {S(sWv)}, 0\ns_cbranch_scc1 L_nopoll2\ns_lshl_b32 s76, {S(sRB)}, 6\ns_add_u32 s76, s76, {WS_OF}")
    poll("L_poll2",vFl,sWS,"s76",1)
    e("L_nopoll2:\ns_barrier")
    stamp("polled")
    for sp in range(10):
        if sp in (4,8): e(f"v_add_u32 {V(vOl)}, 4096, {V(vOl)}")
        e(f"buffer_load_dwordx4 {V(OF+4*sp,4)}, {V(vOl)}, {S(sWS,4)}, 0 offen offset:{1024*(sp%4)} sc1")
    for sp in range(10):
        slot=sp%4
        w=f"s_waitcnt vmcnt({9-sp})"
        if sp==0: w+=" lgkmcnt(0)"
        elif sp>=4: w+=" lgkmcnt(%d)"%(0 if sp==9 else 10 if sp>=8 else 15)
        e(w)
        if 4<=sp<8: pass
        for ct in range(5):
            e(f"v_mfma_f32_16x16x32_bf16 {V(ACC+4*ct,4)}, {V(WF+20*slot+4*ct,4)}, {V(OF+4*sp,4)}, {'0' if sp==0 else V(ACC+4*ct,4)}")
        if sp<6:
            for x in wr(sp+4,slot): e(x)
    stamp("oproj_done")
    e(f"""s_mul_i32 s76, {S(sWv)}, 3072
    s_add_u32 s76, s76, {EX}
    v_add_u32 v2, s76, {V(vL16)}
    s_xor_b32 s77, {S(sWv)}, 4
    s_mul_i32 s77, s77, 3072
    s_add_u32 s77, s77, {EX}
    v_add_u32 v3, s77, {V(vL16)}
    s_cmp_eq_u32 {S(sB)}, 0
    s_cbranch_scc0 L_red_b""")
    def red(send,keep):
        for i,ct in enumerate(send): e(f"ds_write_b128 v2, {V(ACC+4*ct,4)} offset:{1024*i}")
        e("s_waitcnt lgkmcnt(0)\ns_barrier")
        for i,ct in enumerate(keep): e(f"ds_read_b128 {V(16+4*i,4)}, v3 offset:{1024*i}")
        for i,ct in enumerate(keep):
            e(f"s_waitcnt lgkmcnt({len(keep)-1})")
            for r in range(4): e(f"v_add_f32 v{ACC+4*ct+r}, v{ACC+4*ct+r}, v{16+4*i+r}")
            e(f"v_cvt_pk_bf16_f32 v{32+2*i}, v{ACC+4*ct}, v{ACC+4*ct+1}\nv_cvt_pk_bf16_f32 v{33+2*i}, v{ACC+4*ct+2}, v{ACC+4*ct+3}")
            e(f"ds_write_b64 {V(vOs)}, {V(32+2*i,2)} offset:{32*ct}")
    nop(8); red((3,4),(0,1,2)); e("s_branch L_red_j\nL_red_b:"); nop(8); red((0,1,2),(3,4)); e("L_red_j:")
    e(f"""s_lshl_b32 s76, {S(sRB)}, 6
    s_mul_i32 s77, {S(sWv)}, 6
    s_add_u32 s76, s76, s77
    s_mul_i32 s76, s76, 2560
    s_mul_i32 s77, {S(sHG)}, 160
    s_add_u32 s76, s76, s77
    s_add_u32 s77, s76, {48*2560}
    s_waitcnt lgkmcnt(0)
    s_barrier
    ds_read_b128 v[16:19], {V(vOr)}
    ds_read_b128 v[20:23], {V(vOr)} offset:{8*960}
    s_mov_b32 exec_hi, 0x0fffffff
    s_waitcnt lgkmcnt(1)
    buffer_store_dwordx4 v[16:19], {V(vOg)}, {S(sOUT,4)}, s76 offen
    s_cmp_ge_u32 {S(sWv)}, 3
    s_cbranch_scc1 {'L_fin' if OPT['stamp'] else 'L_exit'}
    s_cmp_eq_u32 {S(sWv)}, 2
    s_cselect_b32 exec_hi, 0xff, exec_hi
    s_waitcnt lgkmcnt(0)
    buffer_store_dwordx4 v[20:23], {V(vOg)}, {S(sOUT,4)}, s77 offen""")

def main():
    entry()
    if OPT['stamp']: e("v_mov_b32 v167, 0")
    stamp("issued0")
    e(f"s_barrier\ns_cmp_eq_u32 {S(sRole)}, 0\ns_cbranch_scc1 L_Q0")
    e(f"s_setprio 1\ns_mov_b32 s76, {WS_GO}\nv_mov_b32 v2, 0\nbuffer_load_dwordx2 v[164:165], v2, {S(sWS,4)}, s76 offen sc1")
    kv_addr(); chunk_addr(); chunk_next(); chunk_next(); attn_addr()
    srd(sWO,12,819200); srd(sOUT,28,5242880)
    e("s_waitcnt vmcnt(0)"); lds_inc(L_FLAG+52); lds_spin("L_kvin",L_FLAG+52,8)
    stamp("beta_a")
    kv_proj()
    stamp("kv_done")
    lds_spin("L_kvfree",L_FLAG+56,4)
    chunk_dma(SLOT[2])
    stamp("c2_issued")
    e("s_waitcnt vmcnt(10)"); acked()
    stamp("k_acked")
    lds_spin("L_c0",L_FLAG+64,4)
    chunk_dma(SLOT[0])
    e("s_waitcnt vmcnt(10)"); lds_inc(L_FLAG+32+8)
    stamp("c2_landed")
    lds_spin("L_c1",L_FLAG+68,4)
    chunk_dma(SLOT[1])
    e("s_waitcnt vmcnt(10)"); lds_inc(L_FLAG+32+12)
    e("s_waitcnt vmcnt(0)"); lds_inc(L_FLAG+32+16)
    stamp("c4_landed")
    lds_spin("L_c2",L_FLAG+72,4)
    e(f"""s_cmp_lg_u32 {S(sQ)}, 0
    s_cbranch_scc1 L_k_wait
    s_mov_b32 s{sSpin}, 0
    s_mov_b32 s76, {WS_GO}
    v_mov_b32 v2, 0
    L_poll1:
    buffer_load_dwordx2 v[4:5], v2, {S(sWS,4)}, s76 offen sc1
    s_add_u32 s{sSpin}, s{sSpin}, 1
    s_cmp_gt_u32 s{sSpin}, 0x40000
    s_cbranch_scc1 L_poll1_done
    s_waitcnt vmcnt(0)
    v_cmp_eq_u32 vcc, v4, v164
    v_cmp_eq_u32 s[78:79], v5, v165
    s_nop 1
    s_or_b64 vcc, vcc, s[78:79]
    s_cbranch_vccz L_poll1_done
    s_sleep {OPT['sl']}
    s_branch L_poll1
    L_poll1_done:
    v_mov_b32 v2, {L_FLAG+4}
    v_mov_b32 v3, 1
    ds_write_b32 v2, v3
    s_branch L_k_go
    L_k_wait:""")
    lds_spin("L_spin1",L_FLAG+4,1)
    e("L_k_go:")
    stamp("polled1")
    stats_load(); xcc_load()
    stage_dma(0)
    stamp("st0_issued")
    e("s_waitcnt vmcnt(11)"); stats_reduce(); xcc_reduce()
    e("s_waitcnt vmcnt(0) lgkmcnt(0)\ns_barrier")
    stamp("beta_q")
    e(f"""s_mul_i32 s76, {S(sQ)}, {QXP}
    s_add_u32 s76, s76, {L_QX}
    v_add_u32 v2, s76, {V(vL16)}
    ds_read_b128 v[10:13], v2
    ds_read_b128 v[14:17], v2 offset:1024
    ds_read_b128 v[18:21], v2 offset:2048
    s_waitcnt lgkmcnt(0)""")
    lds_inc(L_FLAG+80)
    e("s_branch L_A1")
    e("L_Q0:")
    chunk_addr()
    if not OPT['late0']: chunk_dma(SLOT[0])
    qproj_addr(); attn_addr()
    srd(sWO,12,819200); srd(sOUT,28,5242880)
    for i in range(32): e(f"v_mov_b32 v{32+i}, 0")
    e(f"s_mul_i32 s76, {S(sQ)}, {QXP}\ns_add_u32 s76, s76, {L_QX}\nv_add_u32 v8, s76, {V(vL16)}")
    e(f"s_waitcnt vmcnt({0 if OPT['late0'] else 10})"); lds_inc(L_FLAG+52)
    if OPT['late0']: chunk_dma(SLOT[0])
    chunk_dma(SLOT[1])
    stamp("c1_issued")
    e("s_waitcnt vmcnt(10)"); lds_inc(L_FLAG+32)
    stamp("c0_landed")
    e(f"s_setprio {OPT['qp']}")
    L.append("    ;QPROJ")
    q_proj()
    stamp("qproj_done")
    e("s_barrier")
    stamp("beta_q")
    e("L_A1:")
    e(f"v_mov_b32 v2, {L_KB}\nds_read_b64 v[8:9], v2\nds_read_b128 v[4:7], v2 offset:16")
    for x in kreads(0)+vreads(0): e(x)
    e("s_setprio 1")
    if OPT['pa']==4: e(f"s_cmp_eq_u32 {S(sB)}, 0\ns_cbranch_scc1 L_nop2\ns_setprio 2\nL_nop2:")
    e(f"""s_mov_b32 s76, {fb(1e-30 if OPT['force_fb'] else 48.0*48.0/2.2)}
    s_waitcnt lgkmcnt(4)
    v_max3_u32 v4, v4, v5, v6
    v_max_u32 v4, v4, v7
    v_readfirstlane_b32 s101, v9
    v_mul_f32 v3, v8, v4
    v_cmp_nle_f32 vcc, v3, s76
    s_cbranch_vccnz L_fallback""")
    attention()
    e("L_tail:")
    stamp("attn_done")
    tail()
    if OPT['stamp']:
        e("L_fin:\ns_waitcnt vmcnt(0)"); stamp("end"); stamp_dump()
    e("L_exit:\ns_endpgm")
    ring_stubs()
    e("L_fallback:"); fallback(); e("s_branch L_tail")
    e("L_B0:")
    if OPT['stamp']: e("v_mov_b32 v167, 0")
    e(f"s_cmp_lt_u32 {S(sQ)}, 3\ns_cselect_b32 s101, {S(sConv)}, 0\ns_waitcnt lgkmcnt(0)\ns_cmp_eq_u32 s101, 0\ns_cbranch_scc1 L_noparam")
    chan(82,sQ)
    e(f"""s_lshl_b32 s83, s82, 8
    v_lshlrev_b32 v2, 2, v0
    v_add_u32 v2, s83, v2
    s_lshl_b32 s82, s82, 1
    v_mov_b32 v3, s82
    global_load_dword {V(vLA)}, v2, s[16:17]
    global_load_dword {V(vAI)}, v2, s[18:19]
    global_load_dword {V(vCR)}, v2, s[20:21]
    global_load_dword {V(vCI)}, v2, s[22:23]
    global_load_ushort {V(vLDT)}, v3, s[24:25]
    global_load_ushort {V(vD)}, v3, s[26:27]
    L_noparam:""")
    srd(sWS,32,WS_SIZE)
    e(f"s_mov_b32 s76, {WS_GO}\nv_mov_b32 v2, 0\nbuffer_load_dwordx2 v[164:165], v2, {S(sWS,4)}, s76 offen sc1\nbuffer_load_dwordx2 v[94:95], v2, {S(sWS,4)}, s76 offen offset:128 sc1")
    stamp("issued0")
    e("s_barrier")
    u_addr()
    srd(sWO,12,819200); srd(sOUT,28,5242880); srd(sDBG,30,256); srd(sU,14,2621440)
    e("s_cmp_eq_u32 s101, 0\ns_cbranch_scc1 L_B_nogen")
    e(f"s_setprio {OPT['kp']}\ns_waitcnt vmcnt(0)")
    stamp("kg_begin")
    kgen_dt(); kgen_setup()
    e(f"s_mov_b32 s{sLoop}, 2\nL_kg:")
    kB()
    e(f"s_cmp_lg_u32 s{sLoop}, 1\ns_cbranch_scc1 L_kg_nou\ns_waitcnt lgkmcnt(0)"); stamp("kg_mid"); e("s_waitcnt vmcnt(0)"); lds_inc(L_FLAG+60); u_part(); stamp("ut_done"); e("s_waitcnt lgkmcnt(0)\nL_kg_nou:")
    kA0()
    def mid():
        e(f"s_waitcnt lgkmcnt(0)\ns_cmp_lg_u32 s{sLoop}, 2\ns_cbranch_scc1 L_kg_ack"); stamp("kg_a1"); u_tile_dma("g"); e("s_branch L_kg_midj\nL_kg_ack:\ns_waitcnt vmcnt(0)"); lds_inc(L_FLAG+28); stamp("b_acked"); e("s_waitcnt lgkmcnt(0)\nL_kg_midj:")
    kA12(True,mid)
    loop_end("L_kg",len(L))
    kgen_finish()
    stamp("kgen_done")
    byq(95,L_CH); expand_pre()
    e("s_branch L_B_gen\nL_B_nogen:\ns_waitcnt vmcnt(0)")
    e(f"s_cmp_eq_u32 {S(sQ)}, 3\ns_cbranch_scc1 L_B3sig")
    u_tile_dma("n"); e("s_waitcnt vmcnt(0)"); lds_inc(L_FLAG+60)
    u_part(); e("s_waitcnt vmcnt(0)"); lds_inc(L_FLAG+28)
    e("s_branch L_nosig\nL_B3sig:")
    for k,(word,cnt,dw,go,r0) in enumerate(((20,4,0,0,164),(28,4,4,128,GU))):
        lds_spin(f"L_spinS{k}",L_FLAG+word,cnt)
        stamp(("k_all","u_all")[k])
        e(f"""s_and_b32 s76, s2, 1
        s_lshl_b32 s77, s76, 7
        v_mov_b32 v2, 0
        v_mov_b32 v3, 1
        s_mov_b64 exec, 1
        buffer_atomic_add v3, v2, {S(sDBG,4)}, s77 offen offset:{dw} sc0 sc1
        s_waitcnt vmcnt(0)
        v_and_b32 v3, 127, v3
        s_nop 0
        v_readfirstlane_b32 s77, v3
        s_nop 1
        s_cmp_lg_u32 s77, 127
        s_cbranch_scc1 L_nogo{k}
        s_cmp_eq_u32 s76, 0
        s_cselect_b64 vcc, -1, 0
        s_lshl_b32 s76, s76, 2
        s_add_u32 s76, s76, {WS_GO+go}
        v_cndmask_b32 v3, v{r0+1}, v{r0}, vcc
        {'v_not_b32 v3, v3' if OPT['gom']==0 else 'v_mov_b32 v3, -1'}
        {'buffer_store_dword' if OPT['gom']==0 else 'buffer_atomic_xor'} v3, v2, {S(sWS,4)}, s76 offen sc1
        L_nogo{k}:
        s_mov_b64 exec, -1""")
        stamp(("signalled","u_signalled")[k])
        if k==0: u_part(); e("s_waitcnt vmcnt(0)"); lds_inc(L_FLAG+28)
    e("L_nosig:")
    byq(95,L_CH)
    e("L_B_gen:")
    e(f"s_cmp_eq_u32 {S(sConv)}, 0\ns_cbranch_scc1 L_B_noaddr")
    conv_addr(); conv7_addr()
    e("L_B_noaddr:\ns_setprio 3\ns_barrier")
    e(f"v_mov_b32 v8, {L_FLAG+100}\nv_mov_b32 v9, 1\ns_mov_b32 s{sSt}, 1\ns_mov_b32 s{sPend}, 1")
    e("s_getpc_b64 s[90:91]\ns_add_u32 s90, s90, 12\ns_addc_u32 s91, s91, 0\ns_branch L_stage_all")
    e(f"s_cmp_eq_u32 {S(sConv)}, 0\ns_cbranch_scc1 L_B_plain\ns_cmp_eq_u32 {S(sQ)}, 3\ns_cbranch_scc1 L_B3")
    stamp("st1_issued")
    lds_spin("L_spinQ",L_FLAG+80,4)
    expand_write()
    stamp("exp_written")
    e(f"""s_mov_b32 s{sSpin}, 0
    s_mov_b32 s76, {WS_GO+128}
    v_mov_b32 v2, 0
    L_pollu:
    buffer_load_dwordx2 v[4:5], v2, {S(sWS,4)}, s76 offen sc1
    s_add_u32 s{sSpin}, s{sSpin}, 1
    s_cmp_gt_u32 s{sSpin}, 0x40000
    s_cbranch_scc1 L_pollu_done
    s_waitcnt vmcnt(0)
    v_cmp_eq_u32 vcc, v4, v94
    v_cmp_eq_u32 s[78:79], v5, v95
    s_nop 1
    s_or_b64 vcc, vcc, s[78:79]
    s_cbranch_vccz L_pollu_done
    s_sleep {OPT['sl']}
    s_branch L_pollu
    L_pollu_done:""")
    stamp("u_go")
    u_dma()
    e("s_waitcnt vmcnt(0)"); u_patch()
    e(f"""v_mov_b32 v2, {L_FLAG+12}
    v_mov_b32 v3, 1
    s_waitcnt lgkmcnt(0)
    ds_add_u32 v2, v3
    s_setprio {OPT['bprio']}""")
    stamp("conv_start")
    wo_prefetch()
    conv(8)
    e("s_setprio 3"); y_publish(False)
    stamp("conv_done")
    e("s_branch L_B_sig\nL_B3:")
    wo_prefetch()
    lds_spin("L_spin7",L_FLAG+12,3*64); e(f"s_setprio {OPT['bprio']}")
    conv7()
    e("s_setprio 3"); y_publish(True)
    stamp("conv_done7")
    e("L_B_sig:")
    y_signal()
    e(f"s_branch L_B_fin\nL_B_plain:")
    wo_prefetch()
    e(f"L_B_fin:\ns_mov_b32 s{sSpin}, 0")
    service(True)
    e(f"s_cmp_eq_u32 {S(sConv)}, 0\ns_cbranch_scc1 L_B_wo")
    lds_spin("L_spin8",L_FLAG+8,4)
    e("L_B_wo:")
    wo_patterns(161)
    stamp("wo_go")
    lds=lambda st: (L_R[0]+5120*st if st<4 else RG[0]+5120*(st-4) if st<10 else L_R[0]+20480+5120*(st-10) if st<14 else RG[0]+30720 if st==14 else RG[1]+5120*(st-15))
    for k,steps in enumerate(([4,5,6,7],[14,15,16,17],[8,9,18,19],[0,1,2,3],[10,11,12,13])):
        if k==3: lds_spin("L_spin9",L_FLAG+112+8,8)
        byq(78,steps); byq(79,[lds(x) for x in steps]); wo_piece(161,78,79)
    stamp("wo_issued")
    y_consume()
    stamp("seg3_done")
    e("s_barrier")
    if OPT['stamp']: e("s_waitcnt vmcnt(0)"); stamp("end"); stamp_dump()
    e("s_endpgm\nL_stage_all:")
    stage_all()
    e("s_setpc_b64 s[90:91]")
    e("L_codeend:")
def q_proj_patch():
    n0=len(L); q_proj()
    for i in range(n0,len(L)):
        if L[i].strip()=="s_barrier":
            L[i]="    s_waitcnt vmcnt(0)\n    s_barrier"; break
main()
L[:]=[y for x in L for y in x.split("\n")]
hdr=open("cdna_kernels/"+NAME+".s.ref").read().split("; Override launch")[0]
out=hdr+f"""; @launch grid=(256,1,1) block=(768,1,1) lds={LDS_SIZE}
.amdgcn_target "amdgcn-amd-amdhsa--gfx950"
.text
.globl {NAME}_kernel
.p2align 8
.type {NAME}_kernel,@function
{NAME}_kernel:
"""+"\n".join(L)+f"""
    s_endpgm
.section .rodata,"a"
.p2align 6
.amdhsa_kernel {NAME}_kernel
  .amdhsa_next_free_vgpr 168
  .amdhsa_next_free_sgpr 102
  .amdhsa_accum_offset 168
  .amdhsa_group_segment_fixed_size 0
  .amdhsa_kernarg_size 120
  .amdhsa_user_sgpr_count 2
  .amdhsa_user_sgpr_kernarg_segment_ptr 1
  .amdhsa_system_sgpr_workgroup_id_x 1
  .amdhsa_float_denorm_mode_32 3
.end_amdhsa_kernel
"""
path=sys.argv[1] if len(sys.argv)>1 else "cdna_kernels/"+NAME+".s"
open(path,"w").write(out)
errs=hz.check(L,"lin")
for a,b in [] : pass
for x in sorted(set(errs)): print("HAZARD",x)
if OPT['stamp']: open(path+".stamps","w").write("\n".join(STAMPS))
print("lines",len(L))
```

```python
import sys, math, struct
import hz
NAME="concat_heads__grouped_kv_mqa__ssm_conv_s4d__prompt"
OPT=dict(stamp=0, force_fb=0, c0=2, c1=3, pa=0, bprio=0, p0=0,p1=4,p2=10,p3=16, late1=1, wrot=1, sl=2, nosig=0, pre=0, noust=0, kp=3, pg=0, late0=0, ackpos=1, q2=0, qsl=1, qp=2, upre=1, himask=0, upad=256, touch=1, ust=0, fast=1, gom=0, ysc=0, asc=0, ackat=1, kack1=1)
for a in sys.argv[2:]:
    k,v=a.split('='); OPT[k]=int(v)
L=[]; LOOPS=[]; STAMPS=[]
def e(s):
    for x in s.split('\n'):
        x=x.strip()
        if x: L.append(('    ' if not x.endswith(':') else '')+x)
def V(a,n=1): return f"v{a}" if n==1 else f"v[{a}:{a+n-1}]"
def S(a,n=1): return f"s{a}" if n==1 else f"s[{a}:{a+n-1}]"
def nop(n):
    while n>0:
        k=min(n,16); e(f"s_nop {k-1}"); n-=k
def fb(x): return "%#x"%struct.unpack('<I',struct.pack('<f',x))[0]
WS_UT0=256; WS_GO=0x2F0000; UTP=4096+OPT['upad']; WS_KV=0x500000; WS_ST=0x580000; WS_OF=0x582000; WS_XI=0x583000; WS_YC=0x584000; WS_YG=0x584800; WS_YT=0x980000; WS_O=0x600000; WS_STAMP=0x880000; WS_SIZE=0xD00000
TILE=2688; VF0=1024; VF1=1728; K2O=2432; HST=8*TILE
SLOT=[0,40960,81920]; WQO=16384
L_WK=81920; L_X8=133120; L_UT=143360; L_STG=153920
L_R=[81920,0]; RG=[43008,124928]; CHP=17536
L_CH=[RG[0],RG[0]+CHP,RG[1],RG[0]]
L_YC=RG[1]+25600
L_KG=150784; NCONV=214
UCP=4576; ROFF=9152; RCP=4224; KGP=4096
L_QX=124928; QXP=3072
L_FBX=78848; L_KB=163072; L_FLAG=163328
LDS_SIZE=163840
GU=94
sX,sWQ,sWKV,sWO,sU,sWS,sOUT,sDBG=36,40,44,48,52,56,60,64
sWv,sQ,sB,sRB,sHG,sRot,sConv,sCI=68,69,70,71,72,73,74,75
sLoop,sSpin,sKC,sBb=96,97,98,99
sRole=100
vL16=1
Qa1,Qa2,Qb1,Qb2=10,14,16,20
vN,vOA0,vOA1,vOA2=22,23,24,25
vKV=[26,27]; vK2=[28,29]; vVa=[30,31]
vLA,vAI,vCR,vCI,vLDT,vD=10,11,12,13,14,15
vP10=9

def stamp(name):
    if not OPT['stamp']: return
    if name not in STAMPS: STAMPS.append(name)
    e(f"s_memrealtime s[92:93]\ns_waitcnt lgkmcnt(0)\nv_writelane_b32 v167, s92, {STAMPS.index(name)}")
def stamp_dyn(name,n,reg,down):
    if OPT['stamp']<2: return
    if name+"0" not in STAMPS:
        for k in range(n): STAMPS.append(name+str(k))
    i=STAMPS.index(name+"0")
    e(f"s_sub_u32 s94, {i+down}, s{reg}")
    e(f"s_memrealtime s[92:93]\ns_mov_b32 m0, s94\ns_waitcnt lgkmcnt(0)\nv_writelane_b32 v167, s92, m0")
def stamp_dump():
    if not OPT['stamp']: return
    e(f"""s_mul_i32 s94, s2, 12
    s_add_u32 s94, s94, {S(sWv)}
    s_lshl_b32 s94, s94, 8
    s_add_u32 s94, s94, {WS_STAMP}
    s_mov_b64 exec, -1
    v_lshlrev_b32 v166, 2, v0
    buffer_store_dword v167, v166, {S(sWS,4)}, s94 offen""")
def srd(s, p, nbytes):
    e(f"s_mov_b32 s{s}, s{p}\ns_mov_b32 s{s+1}, s{p+1}\ns_mov_b32 s{s+2}, {nbytes}\ns_mov_b32 s{s+3}, 0x20000")
def dma(vaddr, srd_, soff, sc1=False):
    e(f"buffer_load_dwordx4 {V(vaddr)}, {S(srd_,4)}, {soff} offen {'sc1 ' if sc1 else ''}lds")
def selb(dst,vals):
    return f"s_mul_i32 s{dst}, {S(sB)}, {vals[1]-vals[0]}\ns_add_u32 s{dst}, s{dst}, {vals[0]}"
def byq(dst,vals):
    e(f"s_mov_b32 s{dst}, {vals[0]}")
    for k in (1,2,3): e(f"s_cmp_eq_u32 {S(sQ)}, {k}\ns_cselect_b32 s{dst}, {vals[k]}, s{dst}")
def div10(dst,src): e(f"v_mul_u32_u24 {V(dst)}, 0x199a, {V(src)}\nv_lshrrev_b32 {V(dst)}, 16, {V(dst)}")
def loop_end(lab,b0):
    e(f"s_sub_u32 s{sLoop}, s{sLoop}, 1\ns_cmp_lg_u32 s{sLoop}, 0\ns_cbranch_scc1 {lab}")
    LOOPS.append((b0,len(L)))

def entry():
    e("s_cmp_ge_u32 s2, 256\ns_cbranch_scc1 L_exit")
    e("s_load_dwordx16 s[4:19], s[0:1], 0\ns_load_dwordx8 s[20:27], s[0:1], 64\ns_load_dwordx4 s[28:31], s[0:1], 96\ns_load_dwordx2 s[32:33], s[0:1], 112")
    e("s_getpc_b64 s[34:35]\nL_pc:")
    e(f"v_lshrrev_b32 v2, 6, v0\nv_and_b32 v0, 63, v0\nv_readfirstlane_b32 {S(sWv)}, v2")
    e(f"s_lshr_b32 s76, s2, 3\ns_and_b32 s77, s2, 7")
    e(f"s_cmp_lg_u32 {S(sWv)}, 3\ns_cbranch_scc1 L_nopf")
    e(f"s_lshl_b32 s78, s76, 11\nv_and_b32 v2, 15, v0\nv_lshlrev_b32 v2, 7, v2\nv_add_u32 v2, s78, v2\nv_min_u32 v2, L_codeend-L_pc-4, v2\nglobal_load_dword v163, v2, s[34:35]")
    e("L_nopf:")
    e(f"""s_and_b32 {S(sQ)}, {S(sWv)}, 3
    s_lshr_b32 {S(sRole)}, {S(sWv)}, 2
    s_and_b32 {S(sB)}, {S(sRole)}, 1
    s_and_b32 s78, s76, 3
    s_lshl_b32 s79, s77, 2
    s_add_u32 {S(sRB)}, s79, s78
    s_lshr_b32 {S(sHG)}, s76, 2
    s_lshl_b32 s78, s78, 1
    s_add_u32 s78, s78, {S(sHG)}
    s_mul_i32 s79, s78, 52
    s_lshr_b32 s79, s79, 8
    s_mul_i32 s79, s79, 5
    s_sub_u32 {S(sRot)}, s78, s79
    s_lshl_b32 s79, {S(sHG)}, 5
    s_add_u32 {S(sCI)}, s79, {S(sRB)}
    s_cmp_lt_u32 {S(sCI)}, {NCONV}
    s_cselect_b32 {S(sConv)}, 1, 0
    v_lshlrev_b32 {V(vL16)}, 4, v0
    s_cmp_eq_u32 {S(sRole)}, 2
    s_cbranch_scc1 L_B0
    s_cmp_lg_u32 {S(sWv)}, 0
    s_cbranch_scc1 L_noflaginit
    v_lshlrev_b32 v2, 2, v0
    v_add_u32 v2, {L_FLAG}, v2
    v_mov_b32 v3, 0
    ds_write_b32 v2, v3
    L_noflaginit:
    s_and_b32 s78, {S(sWv)}, 1
    s_lshl_b32 s79, s78, 2
    v_lshrrev_b32 v5, 4, v0
    v_add_u32 v6, s79, v5
    v_lshlrev_b32 v7, 1, v6
    v_and_b32 v8, 15, v0
    v_xor_b32 v7, v7, v8
    v_lshlrev_b32 v7, 4, v7
    v_mul_u32_u24 v6, 1280, v6
    v_add_u32 v4, v6, v7
    s_lshr_b32 s85, s2, 3
    s_mul_i32 s85, s85, {3*OPT['wrot']}
    s_add_u32 s85, s85, {S(sQ)}""")
    for k in range(4): e("s_cmp_ge_u32 s85, 25\ns_cselect_b32 s84, 25, 0\ns_sub_u32 s85, s85, s84")
    e(f"""s_waitcnt lgkmcnt(0)
    s_cmp_eq_u32 {S(sB)}, 0
    s_cselect_b32 s{sWKV}, s8, s10
    s_cselect_b32 s{sWKV+1}, s9, s11
    s_mov_b32 s{sWKV+2}, 25600
    s_mov_b32 s{sWKV+3}, 0x20000
    s_cselect_b32 s82, 0, 25600
    s_add_u32 s82, s82, {L_WK}""")
    srd(sX,4,2621440)
    e(f"""s_lshl_b32 s80, {S(sRB)}, 3
    s_add_u32 s80, s80, {S(sHG)}
    s_mul_i32 s80, s80, 10240
    s_lshr_b32 s83, {S(sWv)}, 1
    s_lshl_b32 s84, s83, 8
    s_add_u32 s84, s84, s80
    s_lshl_b32 s83, s83, 11
    s_lshl_b32 s81, s78, 10
    s_add_u32 s83, s83, s81
    s_add_u32 m0, s83, {L_X8}
    s_nop 0""")
    dma(4,sX,"s84")
    e(f"s_cmp_ge_u32 {S(sWv)}, 2\ns_cbranch_scc1 L_nox8b\ns_add_u32 m0, s81, {L_X8+4*2048}\ns_add_u32 s84, s80, 1024")
    dma(4,sX,"s84"); e("L_nox8b:")
    for m in range(7):
        if m==6: e(f"s_cmp_lg_u32 {S(sQ)}, 0\ns_cbranch_scc1 L_nowk7")
        e(f"s_lshl_b32 s84, s85, 10\ns_add_u32 m0, s84, s82\ns_add_u32 s85, s85, 4"); dma(vL16,sWKV,"s84")
        if m<6: e("s_cmp_ge_u32 s85, 25\ns_cselect_b32 s84, 25, 0\ns_sub_u32 s85, s85, s84")
    e("L_nowk7:")
    srd(sWS,32,WS_SIZE); srd(sWQ,6,819200)

vXA=100; vWA=108; vXd=109; vWd=160
sXo,sWo,sSl=86,87,90
def chunk_addr():
    e(f"""s_lshl_b32 s76, {S(sQ)}, 2
    v_lshrrev_b32 v2, 4, v0
    v_add_u32 v2, s76, v2
    v_and_b32 v3, 15, v0
    v_xor_b32 v3, v3, v2
    v_lshlrev_b32 v3, 4, v3
    v_mul_u32_u24 v2, 1280, v2
    v_add_u32 {V(vXd)}, v2, v3""")
    for p in range(3):
        e(f"""v_add_u32 v2, {64*p}, v0
        v_mul_u32_u24 v3, 0x1556, v2
        v_lshrrev_b32 v3, 16, v3
        v_mul_u32_u24 v4, 12, v3
        v_sub_u32 v4, v2, v4
        v_lshlrev_b32 v4, 4, v4
        v_mul_u32_u24 v3, 1280, v3
        v_add_u32 {V(vWd+p)}, v3, v4""")
    e(f"""s_mul_i32 s88, {S(sRB)}, 81920
    s_mul_i32 s89, {S(sHG)}, 160
    s_and_b32 s89, s89, 0xffffffc0
    s_mul_i32 s76, {S(sQ)}, 40960
    s_add_u32 s89, s89, s76
    s_mov_b32 s{sKC}, {S(sRot)}""")
def chunk_next(): e(f"s_add_u32 s{sKC}, s{sKC}, 1\ns_cmp_eq_u32 s{sKC}, 5\ns_cselect_b32 s{sKC}, 0, s{sKC}")
def chunk_dma(slot):
    e(f"""s_lshl_b32 s{sXo}, s{sKC}, 8
    s_add_u32 s{sXo}, s{sXo}, s88
    s_mul_i32 s{sWo}, s{sKC}, 163840
    s_add_u32 s{sWo}, s{sWo}, s89
    s_lshl_b32 s{sSl}, {S(sQ)}, 10
    s_mul_i32 s{sSl+1}, {S(sQ)}, 6144""")
    chunk_next()
    for m in range(4):
        e(f"s_add_u32 m0, s{sSl}, {slot+4096*m}\ns_add_u32 s84, s{sXo}, {m*16*1280}"); dma(vXd,sX,"s84")
    for g2 in range(2):
        for p in range(3):
            e(f"s_add_u32 m0, s{sSl+1}, {slot+WQO+3072*g2+1024*p}\ns_add_u32 s84, s{sWo}, {g2*16*1280}"); dma(vWd+p,sWQ,"s84")

def attn_addr():
    e(selb(76,(L_R[0],L_R[0]+HST))); e(selb(77,(L_R[1],L_R[1]+HST)))
    e(f"""v_add_u32 {V(vKV[0])}, s76, {V(vL16)}
    v_add_u32 {V(vKV[1])}, s77, {V(vL16)}
    v_and_b32 v4, 31, v0
    v_lshlrev_b32 v5, 3, v4
    v_add_u32 v5, {K2O}, v5
    v_add_u32 {V(vK2[0])}, s76, v5
    v_add_u32 {V(vK2[1])}, s77, v5
    v_lshrrev_b32 v2, 5, v0
    v_min_u32 v3, 21, v4
    v_mul_u32_u24 v5, 22, v2
    v_add_u32 v3, v3, v5
    v_lshlrev_b32 v3, 4, v3
    v_add_u32 v3, {VF0}, v3
    v_add_u32 {V(vVa[0])}, s76, v3
    v_add_u32 {V(vVa[1])}, s77, v3""")
    e(f"""s_mul_i32 s76, {S(sHG)}, 20
    s_and_b32 s77, {S(sQ)}, 1
    s_mul_i32 s77, s77, 10
    s_add_u32 s76, s76, s77
    s_mul_i32 s77, {S(sB)}, 5
    s_add_u32 s76, s76, s77
    s_mul_i32 s77, {S(sRB)}, 81920
    s_lshr_b32 s78, {S(sQ)}, 1
    s_mul_i32 s78, s78, 40960
    s_add_u32 s77, s77, s78
    s_add_u32 s77, s77, {WS_O}
    v_lshrrev_b32 v5, 4, v4
    v_mul_u32_u24 v5, 20480, v5
    v_and_b32 v6, 15, v0
    v_lshlrev_b32 v6, 4, v6
    v_add_u32 v5, v5, v6
    v_add_u32 v5, s77, v5""")
    for dst,add,useh in ((vOA0,0,1),(vOA1,2,1),(vOA2,4,0)):
        e(f"s_add_u32 s78, s76, {add}")
        e("v_add_u32 v6, s78, v2" if useh else "v_mov_b32 v6, s78")
        e(f"""v_lshrrev_b32 v7, 3, v6
        v_lshlrev_b32 v7, 10, v7
        v_bfe_u32 v8, v6, 2, 1
        v_lshlrev_b32 v8, 9, v8
        v_add_u32 v7, v7, v8
        v_and_b32 v8, 1, v6
        v_lshlrev_b32 v8, 8, v8
        v_add_u32 v7, v7, v8
        v_bfe_u32 v8, v6, 1, 1
        v_lshlrev_b32 v8, 3, v8
        v_add3_u32 {V(dst)}, v7, v8, v5""")
    e(f"v_cmp_gt_u32 vcc, 32, v0\nv_mov_b32 v7, 0x7fffffff\ns_nop 0\nv_cndmask_b32 {V(vOA2)}, v7, {V(vOA2)}, vcc")

def qproj_addr():
    e(f"""s_lshr_b32 s76, {S(sQ)}, 1
    s_lshl_b32 s76, s76, 5
    v_and_b32 v2, 31, v0
    v_add_u32 v2, s76, v2
    v_lshrrev_b32 v3, 5, v0
    v_and_b32 v4, 15, v2
    v_xor_b32 v4, v4, v3
    v_lshlrev_b32 v4, 4, v4
    v_lshlrev_b32 v2, 8, v2
    v_add_u32 {V(vXA)}, v2, v4""")
    for st in range(1,8): e(f"v_xor_b32 {V(vXA+st)}, {32*st}, {V(vXA)}")
    e(f"""s_and_b32 s76, {S(sHG)}, 1
    s_lshl_b32 s76, s76, 5
    s_and_b32 s77, {S(sQ)}, 1
    s_mul_i32 s77, s77, 80
    s_add_u32 s76, s76, s77
    s_add_u32 s76, s76, {WQO}
    v_lshlrev_b32 v3, 3, v3
    v_bfe_u32 v4, v0, 2, 2
    v_add_u32 v3, v3, v4
    v_mul_u32_u24 v3, 192, v3
    v_bfe_u32 v4, v0, 4, 1
    v_lshlrev_b32 v4, 5, v4
    v_add_u32 v3, v3, v4
    v_and_b32 v4, 3, v0
    v_lshlrev_b32 v4, 3, v4
    v_add3_u32 {V(vWA)}, v3, v4, s76""")
def q_proj():
    accA,accB=32,48; F=[64,76,88]
    def reads(st):
        b=F[st%3]
        return [f"ds_read_b128 {V(b,4)}, {V(vXA+st)}",
                f"ds_read_b64_tr_b16 {V(b+4,2)}, {V(vWA)} offset:{st*3072}",
                f"ds_read_b64_tr_b16 {V(b+6,2)}, {V(vWA)} offset:{st*3072+768}",
                f"ds_read_b64_tr_b16 {V(b+8,2)}, {V(vWA)} offset:{st*3072+40}",
                f"ds_read_b64_tr_b16 {V(b+10,2)}, {V(vWA)} offset:{st*3072+808}"]
    e(f"s_mov_b32 s{sLoop}, 5\ns_mov_b32 s79, 0\nv_mov_b32 v6, {L_FLAG+32}\nv_mov_b32 v7, 1\ns_branch L_qspin0\nL_qp:")
    b0=len(L)
    for x in reads(0)+reads(1): e(x)
    for st in range(8):
        if st+2<8:
            for x in reads(st+2): e(x)
        e(f"s_waitcnt lgkmcnt({5*min(2,7-st)})")
        b=F[st%3]
        e(f"v_mfma_f32_32x32x16_bf16 {V(accA,16)}, {V(b+4,4)}, {V(b,4)}, {V(accA,16)}")
        e(f"v_mfma_f32_32x32x16_bf16 {V(accB,16)}, {V(b+8,4)}, {V(b,4)}, {V(accB,16)}")
    e(f"""s_sub_u32 s{sLoop}, s{sLoop}, 1
    s_cmp_eq_u32 s{sLoop}, 0
    s_cbranch_scc1 L_qp_end
    s_mov_b64 exec, 1
    ds_add_u32 v6, v7 offset:32
    s_cmp_lt_u32 s{sLoop}, {3 if OPT['q2'] else 4}
    s_cbranch_scc1 L_qp_noown
    s_cmp_eq_u32 s{sLoop}, 4
    s_cbranch_scc1 L_qp_w10
    s_waitcnt vmcnt(0)
    L_qp_w10:
    s_waitcnt vmcnt({10 if OPT['q2'] else 0})
    ds_add_u32 v6, v7 offset:4
    L_qp_noown:
    s_mov_b64 exec, -1
    v_add_u32 v6, 4, v6
    s_add_u32 s78, s79, 40960
    s_cmp_eq_u32 s78, 122880
    s_cselect_b32 s78, 0, s78
    s_sub_u32 s77, s78, s79
    s_mov_b32 s79, s78""")
    for k in range(9): e(f"v_add_u32 {V(vXA+k)}, s77, {V(vXA+k)}")
    stamp_dyn("qp_done",4,sLoop,4)
    e(f"""L_qspin0:
    s_mov_b32 s{sSpin}, 0
    L_qspin:
    ds_read_b32 v2, v6
    s_add_u32 s{sSpin}, s{sSpin}, 1
    s_cmp_gt_u32 s{sSpin}, 0x1000000
    s_cbranch_scc1 L_qp
    s_waitcnt lgkmcnt(0)
    v_cmp_gt_u32 vcc, 4, v2
    s_cbranch_vccz L_qp
    {'s_sleep 1' if OPT['qsl'] else ''}
    s_branch L_qspin""")
    LOOPS.append((b0,len(L)))
    e("L_qp_end:")
    e(f"s_mov_b32 s76, {fb(20**-0.5*math.log2(math.e))}\nv_cmp_gt_u32 vcc, 32, v0"); nop(11)
    for acc,q1,q2,n in ((accA,Qa1,Qa2,2),(accB,Qb1,Qb2,3)):
        for i in range(12): e(f"v_mul_f32 v{acc+i}, s76, v{acc+i}")
        for i in range(8,12): e(f"v_cndmask_b32 v{acc+i}, 0, v{acc+i}, vcc")
        for i in range(4): e(f"v_cvt_pk_bf16_f32 v{q1+i}, v{acc+2*i}, v{acc+2*i+1}")
        for i in range(2): e(f"v_cvt_pk_bf16_f32 v{q2+i}, v{acc+8+2*i}, v{acc+9+2*i}")
        if acc==accB:
            e(f"""ds_write_b128 v8, v[10:13]
            ds_write_b128 v8, v[14:17] offset:1024
            ds_write_b128 v8, v[18:21] offset:2048""")
        e(f"v_mul_f32 v{n}, v{acc}, v{acc}")
        for i in range(1,12): e(f"v_fmac_f32 v{n}, v{acc+i}, v{acc+i}")
    e(f"v_max_u32 v2, v2, v3")
    for sh in (1,2,4,8): e(f"s_nop 1\nv_max_u32_dpp v2, v2, v2 row_ror:{sh} row_mask:0xf bank_mask:0xf")
    for op in ("v_permlane16_swap_b32","v_permlane32_swap_b32"): e(f"v_mov_b32 v3, v2\ns_nop 1\n{op} v2, v3\ns_nop 1\nv_max_u32 v2, v2, v3")
    e(f"s_lshl_b32 s76, {S(sQ)}, 2\ns_add_u32 s76, s76, {L_KB+16}\nv_mov_b32 v3, s76\nds_write_b32 v3, v2\ns_waitcnt lgkmcnt(0)")

def u_addr():
    e(f"s_lshl_b32 s76, {S(sQ)}, 11\ns_add_u32 s76, s76, {L_STG}")
    e(f"""v_lshrrev_b32 v2, 4, v0
    v_and_b32 v3, 3, v0
    v_bfe_u32 v4, v0, 2, 2
    v_lshlrev_b32 v5, 4, v2
    v_lshlrev_b32 v6, 2, v3
    v_add3_u32 v5, v5, v6, v4
    v_mul_u32_u24 v5, 160, v5
    s_mul_i32 s77, {S(sQ)}, 40
    s_add_u32 s77, s77, {L_UT}
    v_add_u32 v128, s77, v5
    v_xor_b32 v5, v2, v3
    v_lshlrev_b32 v5, 5, v5
    v_lshlrev_b32 v6, 7, v3
    v_lshlrev_b32 v7, 3, v4
    v_add3_u32 v5, v5, v6, v7
    v_add_u32 v129, s76, v5
    v_bfe_u32 v2, v0, 3, 2
    v_bfe_u32 v3, v0, 1, 2
    v_xor_b32 v3, v3, v2
    v_lshlrev_b32 v3, 5, v3
    v_and_b32 v4, 1, v0
    v_lshlrev_b32 v4, 4, v4
    v_lshlrev_b32 v5, 7, v2
    v_add3_u32 v3, v3, v4, v5
    v_lshrrev_b32 v4, 5, v0
    v_lshlrev_b32 v5, 9, v4
    v_add3_u32 v130, v3, v5, s76
    v_lshrrev_b32 v2, 3, v0
    v_mul_u32_u24 v2, {UTP}, v2
    v_and_b32 v3, 7, v0
    v_lshlrev_b32 v3, 4, v3
    v_add_u32 v131, v2, v3
    s_mul_i32 s76, {S(sHG)}, 80
    s_mul_i32 s77, {S(sQ)}, 20
    s_add_u32 s76, s76, s77
    s_mul_i32 s76, s76, {UTP}
    s_lshl_b32 s77, {S(sRB)}, 7
    s_add_u32 s77, s77, s76
    s_add_u32 s86, s77, {WS_UT0}""")
def u_tile_dma():
    div10(2,0)
    e(f"""v_mul_u32_u24 v3, 10, v2
    v_sub_u32 v3, v0, v3
    v_lshlrev_b32 v3, 4, v3
    v_mul_u32_u24 v2, 1280, v2
    v_add_u32 v2, v2, v3
    s_mul_i32 s80, {S(sRB)}, 81920
    s_mul_i32 s81, {S(sHG)}, 160
    s_add_u32 s80, s80, s81
    s_mul_i32 s81, {S(sQ)}, {3*7680}
    s_add_u32 s80, s80, s81
    s_mul_i32 s82, {S(sQ)}, {3*960}
    s_mov_b32 exec_hi, 0x0fffffff""")
    for i in range(3):
        if i==2: e(f"s_cmp_eq_u32 {S(sQ)}, 3\ns_cbranch_scc1 L_ut3")
        e(f"s_add_u32 m0, s82, {L_UT+960*i}\ns_add_u32 s81, s80, {7680*i}"); dma(2,sU,"s81")
    e(f"L_ut3:\ns_mov_b32 exec_hi, -1")
un=[0]
def u_part():
    lds_spin(f"L_spinU{un[0]}",L_FLAG+60,4); un[0]+=1
    for k in range(5): e(f"ds_read_b64_tr_b16 {V(104+2*k,2)}, v128 offset:{8*k}")
    for k in range(5):
        e(f"s_waitcnt lgkmcnt(4)" if k<4 else "s_waitcnt lgkmcnt(6)")
        e(f"ds_write_b64 v129, {V(104+2*k,2)} offset:{512*k if k<4 else 0}")
        if k==3: e(f"ds_read_b128 v[116:119], v130\nds_read_b128 v[120:123], v130 offset:1024")
    e("ds_read_b128 v[124:127], v130")
    for k in range(3):
        e(f"s_waitcnt lgkmcnt({(2,2,0)[k]})")
        if k==2: e("s_mov_b32 exec_hi, 0")
        e(f"s_add_u32 s78, s86, {8*k*UTP}\nbuffer_store_dwordx4 {V(116+4*k,4)}, v131, {S(sWS,4)}, s78 offen sc1")
    e("s_mov_b32 exec_hi, -1")

def kv_addr():
    e(f"""s_lshr_b32 s76, {S(sQ)}, 1
    s_mul_i32 s76, s76, 25600
    s_and_b32 s77, {S(sQ)}, 1
    s_lshl_b32 s77, s77, 5
    s_add_u32 s76, s76, s77
    s_add_u32 s76, s76, {L_WK}
    v_lshrrev_b32 v2, 4, v0
    v_lshlrev_b32 v3, 3, v2
    v_bfe_u32 v4, v0, 2, 2
    v_add_u32 v3, v3, v4
    v_mul_u32_u24 v3, 40, v3
    v_and_b32 v4, 3, v0
    v_lshlrev_b32 v4, 3, v4
    v_add3_u32 v72, v3, v4, s76
    v_and_b32 v3, 7, v0
    v_lshlrev_b32 v4, 1, v3
    v_xor_b32 v4, v4, v2
    v_lshlrev_b32 v4, 4, v4
    v_lshlrev_b32 v3, 8, v3
    v_add_u32 v3, v3, v4
    v_add_u32 v73, {L_X8}, v3
    v_xor_b32 v74, 64, v73
    v_xor_b32 v75, 0x80, v73
    v_xor_b32 v76, 0xc0, v73
    s_lshl_b32 s76, {S(sRB)}, 1
    s_lshr_b32 s77, {S(sHG)}, 2
    s_add_u32 s76, s76, s77
    s_mul_i32 s76, s76, {TILE}
    s_add_u32 s76, s76, {WS_KV}
    s_and_b32 s77, {S(sHG)}, 3
    v_and_b32 v3, 15, v0
    s_cmp_ge_u32 {S(sQ)}, 2
    s_cbranch_scc1 L_kva_v
    s_lshl_b32 s78, s77, 3
    v_add_u32 v3, s78, v3
    s_cmp_eq_u32 {S(sQ)}, 1
    s_cbranch_scc1 L_kva_k1
    v_and_b32 v4, 1, v2
    v_lshlrev_b32 v4, 5, v4
    v_add_u32 v3, v3, v4
    v_lshlrev_b32 v3, 4, v3
    v_lshrrev_b32 v4, 1, v2
    v_lshlrev_b32 v4, 3, v4
    v_add3_u32 v77, v3, v4, s76
    s_mov_b32 s80, 0x00ff00ff
    s_mov_b32 s81, 0x00ff00ff
    s_mov_b64 s[82:83], s[80:81]
    s_branch L_kva_done
    L_kva_k1:
    v_lshlrev_b32 v3, 3, v3
    s_add_u32 s76, s76, {K2O}
    v_add_u32 v77, s76, v3
    s_mov_b32 s80, 0xff
    s_mov_b32 s81, 0
    s_mov_b64 s[82:83], s[80:81]
    s_branch L_kva_done
    L_kva_v:
    s_and_b32 s78, {S(sQ)}, 1
    s_lshl_b32 s79, s78, 4
    v_add_u32 v3, s79, v3
    v_mul_u32_u24 v4, 22, v2
    v_add_u32 v3, v3, v4
    v_lshlrev_b32 v3, 4, v3
    s_lshr_b32 s79, s77, 1
    s_mul_i32 s79, s79, {VF1-VF0}
    s_add_u32 s76, s76, s79
    s_and_b32 s79, s77, 1
    s_lshl_b32 s79, s79, 3
    s_add_u32 s76, s76, s79
    s_add_u32 s76, s76, {VF0}
    v_add_u32 v77, s76, v3
    s_cmp_eq_u32 s78, 0
    s_cselect_b32 s80, -1, 0x003f003f
    s_mov_b32 s81, 0
    s_cselect_b32 s82, -1, 0x000f000f
    s_mov_b32 s83, 0
    L_kva_done:""")
    for i in range(32,36): e(f"v_mov_b32 v{i}, 0")
def kv_proj():
    def reads(u):
        b=40+8*(u%4) if False else 112+8*(u%5)
        e(f"ds_read_b64_tr_b16 {V(b,2)}, v72 offset:{u*1280}\nds_read_b64_tr_b16 {V(b+2,2)}, v72 offset:{u*1280+160}\nds_read_b128 {V(b+4,4)}, {V(73+(u&3))} offset:{2048*(u>>2)}")
    def body(swap):
        for u in range(20):
            b=112+8*(u%5); a,c=(b+4,b) if swap else (b,b+4)
            e(f"s_waitcnt lgkmcnt({3*min(4,19-u)})\nv_mfma_f32_16x16x32_bf16 v[32:35], {V(a,4)}, {V(c,4)}, v[32:35]")
            if u+5<20: reads(u+5)
    for u in range(5): reads(u)
    e(f"s_cmp_ge_u32 {S(sQ)}, 2\ns_cbranch_scc1 L_kvV")
    body(False); e("s_branch L_kvE\nL_kvV:"); body(True); e("L_kvE:")
    e("s_waitcnt lgkmcnt(0)")
    lds_inc(L_FLAG+56)
    stamp("kv_loop")
    e(f"""v_and_b32 v2, 15, v0
    v_cmp_eq_u32 vcc, 4, v2
    v_mov_b32 v3, 0x3f803f80
    s_nop 2
    v_cndmask_b32 v3, 0, v3, vcc
    v_cvt_pk_bf16_f32 v40, v32, v33
    v_cvt_pk_bf16_f32 v41, v34, v35
    v_mul_f32 v42, v32, v32
    v_cndmask_b32 v40, v3, v40, s[82:83]
    v_cndmask_b32 v41, v3, v41, s[82:83]
    s_mov_b64 exec, s[80:81]
    buffer_store_dwordx2 v[40:41], v77, {S(sWS,4)}, 0 offen sc1
    s_mov_b64 exec, -1
    v_fmac_f32 v42, v33, v33
    v_fmac_f32 v42, v34, v34
    v_fmac_f32 v42, v35, v35
    v_cndmask_b32 v42, 0, v42, s[82:83]
    v_mov_b32 v43, v42
    s_nop 1
    v_permlane32_swap_b32 v42, v43
    s_nop 1
    v_add_f32 v42, v42, v43
    v_mov_b32 v43, v42
    s_nop 1
    v_permlane16_swap_b32 v42, v43
    s_nop 1
    v_add_f32 v42, v42, v43""")
    for sh in (1,2,4,8): e(f"s_nop 1\nv_max_u32_dpp v42, v42, v42 row_ror:{sh} row_mask:0xf bank_mask:0xf")
    e(f"""s_lshl_b32 s76, {S(sQ)}, 2
    s_add_u32 s76, s76, {L_FLAG+128}
    v_mov_b32 v2, s76
    s_mov_b64 exec, 1
    ds_write_b32 v2, v42
    v_mov_b32 v2, 0
    s_cmp_lg_u32 {S(sQ)}, 1
    s_cbranch_scc1 L_noofr
    s_lshl_b32 s76, {S(sRB)}, 6
    s_lshl_b32 s77, {S(sHG)}, 2
    s_add_u32 s76, s76, s77
    s_add_u32 s76, s76, {WS_OF}
    s_getreg_b32 s77, hwreg(HW_REG_XCC_ID)
    s_and_b32 s77, s77, 0x7fffffff
    v_mov_b32 v3, s77
    buffer_store_dword v3, v2, {S(sWS,4)}, s76 offen sc1
    s_cmp_ge_u32 s2, 16
    s_cbranch_scc1 L_noofr
    s_lshl_b32 s76, s2, 8
    s_add_u32 s76, s76, {WS_YC}
    buffer_store_dword v2, v2, {S(sWS,4)}, s76 offen sc1
    L_noofr:
    s_mov_b64 exec, -1""")

def poll(lab,vaddr,srd_,soff,want):
    e(f"""s_mov_b32 s{sSpin}, 0
    {lab}:
    buffer_load_dword v3, {V(vaddr)}, {S(srd_,4)}, {soff} offen sc1
    s_add_u32 s{sSpin}, s{sSpin}, 1
    s_cmp_gt_u32 s{sSpin}, 0x40000
    s_cbranch_scc1 {lab}_done
    s_waitcnt vmcnt(0)
    v_cmp_gt_u32 vcc, {want}, v3
    s_cbranch_vccz {lab}_done
    s_sleep {OPT['sl']}
    s_branch {lab}
    {lab}_done:""")
def lds_spin(lab,addr,want):
    e(f"""s_mov_b32 s{sSpin}, 0
    v_mov_b32 v2, {addr}
    {lab}:
    ds_read_b32 v3, v2
    s_add_u32 s{sSpin}, s{sSpin}, 1
    s_cmp_gt_u32 s{sSpin}, 0x1000000
    s_cbranch_scc1 {lab}_done
    s_waitcnt lgkmcnt(0)
    v_cmp_gt_u32 vcc, {want}, v3
    s_cbranch_vccz {lab}_done
    s_sleep 1
    s_branch {lab}
    {lab}_done:""")
def stage_dma(stage):
    slot=L_R[stage&1]
    for m in range(11):
        e(f"s_add_u32 s84, {S(sQ)}, {4*m}")
        if m==10: e("s_min_u32 s84, s84, 41")
        if 4*m+3<21: e(f"s_lshl_b32 s84, s84, 10\ns_add_u32 m0, s84, {slot}\ns_add_u32 s84, s84, {WS_KV+stage*HST}")
        elif 4*m>=21: e(f"s_lshl_b32 s84, s84, 10\ns_add_u32 m0, s84, {slot}\ns_add_u32 s84, s84, {WS_KV+stage*HST+32*TILE-HST}")
        else: e(f"s_cmp_ge_u32 s84, 21\ns_cselect_b32 s85, {32*TILE-HST}, 0\ns_lshl_b32 s84, s84, 10\ns_add_u32 m0, s84, {slot}\ns_add_u32 s84, s84, s85\ns_add_u32 s84, s84, {WS_KV+stage*HST}")
        dma(vL16,sWS,"s84",sc1=True)
def stage_all():
    e(f"""s_and_b32 s88, s{sSt}, 1
    s_mul_i32 s88, s88, {L_R[1]-L_R[0]}
    s_add_u32 s88, s88, {L_R[0]}
    s_mul_i32 s89, s{sSt}, {HST}
    s_add_u32 s89, s89, {WS_KV}""")
    for m in range(11):
        e(f"s_add_u32 s84, {S(sQ)}, {4*m}")
        if m==10: e("s_min_u32 s84, s84, 41")
        if 4*m+3<21: e(f"s_lshl_b32 s84, s84, 10\ns_add_u32 m0, s84, s88\ns_add_u32 s84, s84, s89")
        elif 4*m>=21: e(f"s_lshl_b32 s84, s84, 10\ns_add_u32 m0, s84, s88\ns_add_u32 s84, s84, s89\ns_add_u32 s84, s84, {32*TILE-HST}")
        else: e(f"s_cmp_ge_u32 s84, 21\ns_cselect_b32 s85, {32*TILE-HST}, 0\ns_lshl_b32 s84, s84, 10\ns_add_u32 m0, s84, s88\ns_add_u32 s84, s84, s85\ns_add_u32 s84, s84, s89")
        dma(vL16,sWS,"s84",sc1=True)
sSt,sPend=98,99
svc=[0]
def service(block=False):
    n=svc[0]; svc[0]+=1
    e(f"""L_sv{n}:
    s_cmp_eq_u32 s{sPend}, 0
    s_cbranch_scc1 L_sv{n}_a
    s_waitcnt vmcnt(0)
    s_mov_b64 exec, 1
    ds_add_u32 v8, v9
    s_mov_b64 exec, -1
    v_add_u32 v8, 4, v8
    s_waitcnt lgkmcnt(0)
    s_add_u32 s{sSt}, s{sSt}, 1
    s_mov_b32 s{sPend}, 0
    L_sv{n}_a:
    s_cmp_gt_u32 s{sSt}, 3
    s_cbranch_scc1 L_sv{n}_z
    ds_read_b32 v3, v8 offset:8
    s_waitcnt lgkmcnt(0)
    v_cmp_gt_u32 vcc, 8, v3
    s_cbranch_vccnz L_sv{n}_n
    s_getpc_b64 s[90:91]
    s_add_u32 s90, s90, 12
    s_addc_u32 s91, s91, 0
    s_branch L_stage_all
    s_mov_b32 s{sPend}, 1
    L_sv{n}_n:""")
    if block: e(f"s_add_u32 s{sSpin}, s{sSpin}, 1\ns_cmp_gt_u32 s{sSpin}, 0x1000000\ns_cbranch_scc1 L_sv{n}_z\ns_sleep 1\ns_branch L_sv{n}")
    e(f"L_sv{n}_z:")
def xcc_load():
    e(f"s_lshl_b32 s76, {S(sRB)}, 6\ns_add_u32 s76, s76, {WS_OF}\nv_and_b32 v2, 7, v0\nv_lshlrev_b32 v2, 2, v2\nbuffer_load_dword v48, v2, {S(sWS,4)}, s76 offen sc1")
def xcc_reduce():
    e(f"""s_getreg_b32 s77, hwreg(HW_REG_XCC_ID)
    s_and_b32 s77, s77, 0x7fffffff
    v_and_b32 v48, 0x7fffffff, v48
    v_cmp_ne_u32 vcc, s77, v48
    v_mov_b32 v2, {L_KB+4}
    s_nop 0
    s_cmp_eq_u64 vcc, 0
    s_cselect_b32 s77, {OPT['fast']}, 0
    v_mov_b32 v3, s77
    ds_write_b32 v2, v3""")
def class_to_lds():
    lim=[100.0*100.0/2.2/t for t in (128.0,1024.0,8192.0)]
    if OPT['force_fb']: lim=[1e-30]*3
    e(f"""v_xor_b32 v4, v4, v164
    v_xor_b32 v5, v5, v165
    v_or_b32 v4, v4, v5
    s_nop 0
    v_readfirstlane_b32 s76, v4
    s_mov_b32 s77, {fb(lim[0])}
    s_and_b32 s78, s76, 0xff00
    s_cselect_b32 s77, {fb(lim[1])}, s77
    s_and_b32 s78, s76, 0xff0000
    s_cselect_b32 s77, {fb(lim[2])}, s77
    s_and_b32 s78, s76, 0xff000000
    s_cselect_b32 s77, {fb(-1.0)}, s77
    v_mov_b32 v2, {L_KB}
    v_mov_b32 v3, s77
    ds_write_b32 v2, v3""")

D0,GB,ZA=16,28,44
z1,z16,z256,z512,z768,z1024,cur,cu2,tmp=60,62,64,66,68,70,72,74,76
ZE=78; CV=136; vKGw,vKGr,a2,b2,vDT,Cp=96,97,98,99,100,102
def cmul(d,a,b):
    assert d!=a and d!=b
    e(f"v_pk_mul_f32 {V(d,2)}, {V(a,2)}, {V(b,2)} op_sel:[0,0] op_sel_hi:[1,0]")
    e(f"v_pk_fma_f32 {V(d,2)}, {V(a,2)}, {V(b,2)}, {V(d,2)} op_sel:[1,1,0] op_sel_hi:[0,1,1] neg_lo:[0,1,0]")
LOG2E=0x3fb8aa3b; INV2PI=0x3e22f983
def rne_bf16(dst,src): e(f"v_cvt_pk_bf16_f32 {V(dst)}, {V(src)}, {V(src)}\nv_and_b32 {V(dst)}, 0xffff0000, {V(dst)}")
def kgen_dt():
    e(f"v_lshlrev_b32 v2, 16, {V(vLDT)}\nv_mul_f32 v2, {LOG2E:#x}, v2\nv_exp_f32 v2, v2\ns_nop 0")
    rne_bf16(vDT,2)
    e(f"""s_mul_i32 s95, {S(sQ)}, {KGP}
    s_add_u32 s95, s95, {L_KG}
    v_lshlrev_b32 v2, 6, v0
    v_bfe_u32 v3, v0, 1, 2
    v_lshlrev_b32 v3, 4, v3
    v_add3_u32 {V(vKGw)}, v2, v3, s95
    v_xor_b32 v156, 16, {V(vKGw)}
    v_xor_b32 v157, 32, {V(vKGw)}
    v_xor_b32 v158, 48, {V(vKGw)}
    v_lshrrev_b32 v2, 2, v0
    v_bfe_u32 v3, v0, 3, 2
    v_bfe_u32 v4, v0, 1, 1
    v_xor_b32 v3, v3, v4
    v_lshlrev_b32 v3, 4, v3
    v_lshlrev_b32 v2, 6, v2
    v_and_b32 v4, 1, v0
    v_lshlrev_b32 v4, 3, v4
    v_add3_u32 v2, v2, v3, v4
    v_add_u32 {V(vKGr)}, s95, v2
    v_xor_b32 v159, 32, {V(vKGr)}""")
    for i in range(12): e(f"v_mov_b32 v{D0+i}, 0")
def kgen_setup():
    e(f"""v_and_b32 v2, 0xffff0000, {V(vLA)}
    v_and_b32 v3, 0xffff0000, {V(vAI)}
    v_and_b32 v4, 0xffff0000, {V(vCR)}
    v_and_b32 v5, 0xffff0000, {V(vCI)}
    v_mul_f32 v2, {LOG2E:#x}, v2
    v_exp_f32 v2, v2
    v_mul_f32 v3, v3, {V(vDT)}
    v_add_f32 v6, {V(vDT)}, {V(vDT)}""")
    rne_bf16(2,2)
    e(f"""v_mul_f32 {V(b2)}, {INV2PI:#x}, v3
    v_mul_f32 v2, v2, {V(vDT)}
    v_mul_f32 {V(Cp)}, v4, v6
    v_mul_f32 {V(a2)}, {LOG2E^0x80000000:#x}, v2
    v_mul_f32 {V(Cp+1)}, v5, v6""")
    for r in (vLA,vAI,vCR,vCI): e(f"v_lshlrev_b32 {V(r)}, 16, {V(r)}")
    for z,p in ((z1,1.0),(z16,16.0),(z256,256.0)):
        e(f"""v_mul_f32 v2, {fb(p)}, {V(a2)}
        v_mul_f32 v3, {fb(p)}, {V(b2)}
        v_exp_f32 v2, v2
        v_fract_f32 v3, v3
        v_cos_f32 v4, v3
        v_sin_f32 v5, v3
        s_nop 0
        v_mul_f32 {V(z)}, v2, v4
        v_mul_f32 {V(z+1)}, v2, v5""")
cvi=[0]
def put2(row,za,zb,neg=False):
    base=CV+8*((row>>3)&1); k=(row>>1)&3; ng='-' if neg else ''
    if za is None: e(f"v_cvt_pk_bf16_f32 {V(base+k)}, 1.0, {V(zb)}\nv_cvt_pk_bf16_f32 {V(base+4+k)}, 0, {V(zb+1)}")
    else: e(f"v_cvt_pk_bf16_f32 {V(base+k)}, {V(za)}, {V(zb)}\nv_cvt_pk_bf16_f32 {V(base+4+k)}, {ng}{V(za+1)}, {ng}{V(zb+1)}")
    if k==3:
        wr_,wi_=(vKGw,157) if row<8 else (156,158)
        e(f"ds_write_b128 {V(wr_)}, {V(base,4)}\nds_write_b128 {V(wi_)}, {V(base+4,4)}")
def tile_reads(dst):
    for s_ in range(4): e(f"ds_read_b64_tr_b16 {V(dst+4*s_,2)}, {V(vKGr)} offset:{1024*s_}\nds_read_b64_tr_b16 {V(dst+4*s_+2,2)}, v159 offset:{1024*s_}")
def tile_mf(D):
    for s_ in range(4): e(f"s_waitcnt lgkmcnt({6-2*s_})\nv_mfma_f32_16x16x32_bf16 {V(D,4)}, {V(ZA+4*s_,4)}, {V(GB+4*s_,4)}, {V(D,4)}")
Zk=lambda k: ZE+(k-2)
def kB():
    p=Cp
    for j in range(1,16):
        n=cur if (j&1) else cu2
        cmul(n,p,z16)
        if j&1: put2(j-1,p,n,True)
        p=n
    stamp_dyn("kgBw",2,sLoop,2)
    tile_reads(GB)
def kA0():
    put2(0,None,z1); p=z1
    for ee in range(2,16):
        n = ZE+(ee-2) if ee%2==0 else cur
        cmul(n,p,z1)
        if ee&1: put2(ee-1,p,n)
        p=n
    stamp_dyn("kgA0w",2,sLoop,2)
    tile_reads(ZA)
    cmul(z512,z256,z256); cmul(z768,z512,z256); cmul(z1024,z512,z512)
    tile_mf(D0)
    stamp_dyn("kgA0m",2,sLoop,2)
def kA12(more,mid=None):
    Z=Zk; p=z256
    for k in range(1,8):
        n=cur if (k&1) else cu2
        cmul(n,z256,Z(2*k))
        if k&1: put2(k-1,p,n)
        p=n
    for base,z in ((8,z512),(12,z768)):
        cmul(cur,z,Z(4)); put2(base,z,cur)
        cmul(cu2,z,Z(8)); cmul(cur,z,Z(12)); put2(base+2,cu2,cur)
    tile_reads(ZA)
    if mid: mid()
    cmul(cur,z1024,Z(8)); put2(0,z1024,cur)
    cmul(Cp,z1024,z512); cmul(cu2,z1024,z256); cmul(z1,z1024,z768)
    cmul(cur,cu2,Z(8)); put2(2,cu2,cur)
    tile_mf(D0+4)
    stamp_dyn("kgA1m",2,sLoop,2)
    cmul(cur,Cp,Z(8)); put2(4,Cp,cur)
    cmul(cur,z1,Z(8)); cmul(tmp,z1,z16); put2(6,z1,cur)
    e(f"v_cvt_pk_bf16_f32 {V(CV+8)}, {V(tmp)}, {V(tmp)}\nv_cvt_pk_bf16_f32 {V(CV+9)}, {V(tmp+1)}, {V(tmp+1)}")
    e(f"ds_write_b32 v156, {V(CV+8)}\nds_write_b32 v158, {V(CV+9)}")
    tile_reads(ZA)
    if more: kgen_setup()
    tile_mf(D0+8)
    stamp_dyn("kgA2m",2,sLoop,2)
def lds_inc(addr):
    e(f"v_mov_b32 v2, {addr}\nv_mov_b32 v3, 1\ns_mov_b64 exec, 1\nds_add_u32 v2, v3\ns_mov_b64 exec, -1")
def acked():
    e(f"s_waitcnt lgkmcnt(0)\nv_mov_b32 v2, {L_FLAG+20}\nv_mov_b32 v3, 1\ns_mov_b64 exec, 1\nds_add_u32 v2, v3\ns_mov_b64 exec, -1")
def kgen_finish():
    d=D0
    e(f"""v_and_b32 v2, 15, v0
    v_lshrrev_b32 v3, 4, v0
    v_cmp_gt_u32 vcc, 32, v0
    v_lshlrev_b32 v4, 4, v2
    v_lshlrev_b32 v5, 3, v3
    v_add_u32 v4, v4, v5
    v_lshlrev_b32 v5, 7, v3
    v_lshlrev_b32 v6, 3, v2
    v_add_u32 v5, v5, v6
    v_cndmask_b32 v4, v5, v4, vcc
    v_add_u32 v4, s95, v4
    v_lshlrev_b32 v5, 7, v3
    v_lshlrev_b32 v6, 2, v2
    v_add3_u32 v5, v5, v6, s95
    v_lshlrev_b32 v6, 16, {V(vD)}
    v_cmp_eq_u32 s[78:79], 0, v0
    v_lshlrev_b32 v8, 2, v0
    v_add_u32 v8, s95, v8
    v_cndmask_b32 v6, 0, v6, s[78:79]
    v_add_f32 v{d}, v{d}, v6
    v_cvt_pk_bf16_f32 v110, v{d+3}, v{d+2}
    v_cvt_pk_bf16_f32 v111, v{d+1}, v{d}
    v_cvt_pk_bf16_f32 v28, v{d+4}, v{d+5}
    v_cvt_pk_bf16_f32 v29, v{d+6}, v{d+7}
    v_cvt_pk_bf16_f32 v30, v{d+8}, v{d+9}
    v_cvt_pk_bf16_f32 v31, v{d+10}, v{d+11}
    v_mov_b32 v7, s95
    ds_write_b64 v4, v[28:29]
    s_mov_b64 exec, vcc
    ds_write2_b32 v5, v30, v31 offset0:128 offset1:144
    s_mov_b32 exec_lo, 0
    s_mov_b32 exec_hi, 0x8000
    ds_write_b32 v7, v30 offset:768
    s_mov_b64 exec, -1
    ds_read2_b32 v[104:105], v8 offset0:0 offset1:1
    ds_read2_b32 v[106:107], v8 offset0:64 offset1:65
    ds_read2_b32 v[108:109], v8 offset0:128 offset1:129
    s_waitcnt lgkmcnt(0)""")
def chan(dst,breg=None,b=None):
    e(f"s_mul_i32 s{dst}, {S(sCI)}, 3")
    e(f"s_add_u32 s{dst}, s{dst}, {S(breg) if breg is not None else b}\ns_min_u32 s{dst}, s{dst}, 639")
def u_dma():
    chan(77,sQ)
    e(f"s_mul_i32 s77, s77, {UTP}")
    for rho in (1,0):
        for i in range(4):
            e(f"s_add_u32 m0, s95, {rho*UCP+448+1024*i}\ns_add_u32 s78, s77, {WS_UT0-(2 if rho==0 else 0)+1024*i}"); dma(vL16,sWS,"s78",sc1=True)
def expand_pre():
    R1=RCP-4
    e(f"""s_add_u32 s76, s95, {ROFF}
    s_mov_b32 s77, 0x01000100
    s_mov_b32 s78, 0x03020302
    s_mov_b32 s79, 0x03020504
    s_mov_b32 s81, 0x01000302
    v_and_b32 v2, 15, v0
    v_lshlrev_b32 v2, 5, v2
    v_lshrrev_b32 v3, 4, v0
    v_lshlrev_b32 v3, 3, v3
    v_add_u32 v2, v2, v3
    s_add_u32 s82, s76, 4088
    v_sub_u32 v140, s82, v2
    v_lshlrev_b32 v3, 3, v0
    s_add_u32 s82, s76, 4088-512
    v_sub_u32 v141, s82, v3
    s_add_u32 s82, s76, 3056
    v_sub_u32 v142, s82, {V(vL16)}
    v_lshlrev_b32 v5, 5, v0
    s_add_u32 s82, s76, 2016
    v_sub_u32 v143, s82, v5
    v_perm_b32 v112, v105, v104, s79
    v_perm_b32 v113, v104, v104, s77
    v_perm_b32 v116, v107, v107, s77
    v_perm_b32 v117, v106, v106, s78
    v_perm_b32 v118, v106, v106, s81
    v_perm_b32 v119, v106, v106, s77
    v_perm_b32 v120, v109, v109, s77
    v_perm_b32 v121, v109, v109, s77
    v_perm_b32 v122, v108, v108, s78
    v_perm_b32 v123, v108, v108, s78
    v_perm_b32 v124, v108, v108, s78
    v_perm_b32 v125, v108, v108, s81
    v_perm_b32 v126, v108, v108, s77
    v_perm_b32 v127, v108, v108, s77
    v_add_u32 v144, {R1}, v140
    v_add_u32 v145, {R1}, v141
    v_add_u32 v146, {R1}, v142
    v_add_u32 v147, {R1}, v143
    v_mov_b32 v152, 0
    v_mov_b32 v153, 0
    v_mov_b32 v154, 0
    v_mov_b32 v155, 0
    v_lshlrev_b32 v2, 2, v0
    v_add_u32 v148, s76, v2
    v_lshrrev_b32 v3, 5, v0
    v_mul_u32_u24 v3, {UCP-512}, v3
    v_add3_u32 v149, v3, {V(vL16)}, s95
    v_mov_b32 v150, s95""")
def expand_write():
    e(f"""ds_write_b64 v140, v[110:111]
    ds_write_b64 v141, v[112:113]
    ds_write_b128 v142, v[116:119]
    ds_write_b128 v143, v[120:123]
    ds_write_b128 v143, v[124:127] offset:16
    ds_write2_b32 v144, v110, v111 offset0:0 offset1:1
    ds_write2_b32 v145, v112, v113 offset0:0 offset1:1
    ds_write2_b32 v146, v116, v117 offset0:0 offset1:1
    ds_write2_b32 v146, v118, v119 offset0:2 offset1:3
    ds_write2_b32 v147, v120, v121 offset0:0 offset1:1
    ds_write2_b32 v147, v122, v123 offset0:2 offset1:3
    ds_write2_b32 v147, v124, v125 offset0:4 offset1:5
    ds_write2_b32 v147, v126, v127 offset0:6 offset1:7
    s_mov_b32 exec_hi, 0
    s_mov_b32 exec_lo, 0xffff
    ds_write_b32 v148, v152 offset:4096
    ds_write_b32 v148, v152 offset:{RCP+4092}
    s_mov_b32 exec_lo, 0x0fffffff
    s_mov_b32 exec_hi, 0x0fffffff
    ds_write_b128 v149, v[152:155]
    s_mov_b64 exec, -1""")
def u_patch():
    e("s_mov_b64 exec, 1\nds_write_b16 v150, v152 offset:448\ns_mov_b64 exec, -1")
cACC,cU,cK,vUa,vKa=16,48,80,10,11
def conv_addr():
    e(f"""v_and_b32 v2, 1, v0
    v_mul_u32_u24 v3, {UCP}, v2
    v_bfe_u32 v4, v0, 1, 3
    v_lshlrev_b32 v4, 6, v4
    v_lshrrev_b32 v5, 4, v0
    v_lshlrev_b32 v5, 4, v5
    v_add3_u32 v3, v3, v4, v5
    s_add_u32 s78, s95, 448
    v_add_u32 {V(vUa)}, s78, v3
    v_and_b32 v3, 15, v0
    v_lshlrev_b32 v3, 2, v3
    v_sub_u32 v3, v5, v3
    v_mul_u32_u24 v2, {RCP-4}, v2
    v_sub_u32 v3, v3, v2
    s_add_u32 s78, s95, {ROFF+4092-3584+RCP-4}
    v_add_u32 {V(vKa)}, s78, v3""")
    for i in range(36): e(f"v_mov_b32 v{cACC+i}, 0")
cnum=[0]
def conv(n):
    SETS=[(36,68),(100,132)]
    def rd(st):
        U,K=SETS[st]; r=[]
        for m in (0,3,1,2,4,5,6,7):
            r+=[f"ds_read_b64 {V(K+4*m,2)}, {V(vKa)} offset:{512*(7-m)}",f"ds_read_b64 {V(K+4*m+2,2)}, {V(vKa)} offset:{512*(7-m)+8}",f"ds_read_b128 {V(U+4*m,4)}, {V(vUa)} offset:{512*m}"]
        r.append(f"v_add_u32 {V(vKa)}, -64, {V(vKa)}\nv_add_u32 {V(vUa)}, -64, {V(vUa)}")
        return r
    for x in rd(0): e(x)
    e(f"s_mov_b32 s{sLoop}, 4\nL_cv:"); b0=len(L)
    order=sorted([(ii,m) for ii in range(8) for m in range(8-ii) if ii+m>=3], key=lambda p:(max(p),p))
    assert len(order)==30
    for st in range(2):
        U,K=SETS[st]; nx=rd(1-st); k=0
        e("s_waitcnt lgkmcnt(0)")
        for n_,(ii,m) in enumerate(order):
            c=ii+m-3
            e(f"v_mfma_f32_16x16x32_bf16 {V(cACC+4*c,4)}, {V(U+4*m,4)}, {V(K+4*ii,4)}, {V(cACC+4*c,4)}")
            if k<len(nx): e(nx[k]); k+=1
        service()
    loop_end("L_cv",b0)
    e("s_waitcnt lgkmcnt(0)")
def conv7():
    SETS=[(52,64),(76,88)]
    def rd(ch,st):
        U,K=SETS[st]; r=[]
        ua,ka=(vUa,vKa) if ch<2 else (12,13); d=CHP if ch==1 else 0
        for m in range(3):
            r+=[f"ds_read_b64 {V(K+4*m,2)}, {V(ka)} offset:{d+512*(7-m)}",f"ds_read_b64 {V(K+4*m+2,2)}, {V(ka)} offset:{d+512*(7-m)+8}",f"ds_read_b128 {V(U+4*m,4)}, {V(ua)} offset:{d+512*m}"]
        if ch==1: r.append(f"v_add_u32 {V(vKa)}, -64, {V(vKa)}\nv_add_u32 {V(vUa)}, -64, {V(vUa)}")
        if ch==2: r.append("v_add_u32 v12, -64, v12\nv_add_u32 v13, -64, v13")
        return r
    for x in rd(0,0): e(x)
    e(f"s_mov_b32 s{sLoop}, 4\nL_cv7:"); b0=len(L)
    for u in range(6):
        ch=u%3; st=u&1; U,K=SETS[st]; nx=rd((u+1)%3,1-st); k=0
        e("s_waitcnt lgkmcnt(0)")
        for ii in range(3):
            for m in range(3-ii):
                a=cACC+12*ch+4*(ii+m)
                e(f"v_mfma_f32_16x16x32_bf16 {V(a,4)}, {V(U+4*m,4)}, {V(K+4*ii,4)}, {V(a,4)}")
                for x in nx[k:k+3]: e(x)
                k+=3
        assert k>=len(nx)
        if ch==2: service()
    loop_end("L_cv7",b0)
    e("s_waitcnt lgkmcnt(0)")
def conv7_addr():
    d=L_CH[2]-L_CH[0]
    e(f"v_add_u32 v12, {d}, {V(vUa)}\nv_add_u32 v13, {d}, {V(vKa)}")
def y_publish(seven):
    e(f"""v_lshrrev_b32 v2, 4, v0
    v_lshlrev_b32 v2, 7, v2
    v_and_b32 v3, 15, v0
    v_lshlrev_b32 v3, 2, v3
    v_add_u32 v2, v2, v3""")
    if not seven:
        chan(76,sQ); e(f"s_mul_i32 s76, s76, {UTP}\ns_add_u32 s76, s76, {WS_YT}")
    nop(4)
    for c in range(9 if seven else 5):
        t0=60+2*c
        e(f"v_cvt_pk_bf16_f32 v{t0}, v{cACC+4*c}, v{cACC+4*c+1}\nv_cvt_pk_bf16_f32 v{t0+1}, v{cACC+4*c+2}, v{cACC+4*c+3}")
        if seven and c%3==0: chan(76,None,c//3); e(f"s_mul_i32 s76, s76, {UTP}\ns_add_u32 s76, s76, {WS_YT}")
        o=512*(c%3) if seven else 512*(c+3)
        e(f"buffer_store_dword v{t0}, v2, {S(sWS,4)}, s76 offen offset:{o} sc1\nbuffer_store_dword v{t0+1}, v2, {S(sWS,4)}, s76 offen offset:{o+64} sc1")
def y_signal():
    e(f"""s_waitcnt vmcnt(0)
    v_mov_b32 v2, {L_FLAG+8}
    v_mov_b32 v3, 1
    s_mov_b64 exec, 1
    ds_add_rtn_u32 v4, v2, v3
    s_waitcnt lgkmcnt(0)
    v_readfirstlane_b32 s76, v4
    s_nop 1
    s_cmp_lg_u32 s76, 3
    s_cbranch_scc1 L_noysig""")
    chan(76,None,0); chan(77,None,2)
    e("""s_mul_i32 s76, s76, 52429
    s_lshr_b32 s76, s76, 22
    s_mul_i32 s77, s77, 52429
    s_lshr_b32 s77, s77, 22""")
    for k,g in enumerate((76,77)):
        if k==1: e("s_cmp_eq_u32 s76, s77\ns_cbranch_scc1 L_noysig")
        e(f"""s_lshl_b32 s78, s{g}, 8
        s_add_u32 s78, s78, {WS_YC}
        v_mov_b32 v2, 0
        v_mov_b32 v3, 1
        buffer_atomic_add v3, v2, {S(sWS,4)}, s78 offen sc0 sc1
        s_mul_i32 s79, s{g}, 80
        s_add_u32 s80, s79, 79
        s_mul_i32 s79, s79, 21846
        s_lshr_b32 s79, s79, 16
        s_mul_i32 s80, s80, 21846
        s_lshr_b32 s80, s80, 16
        s_sub_u32 s79, s80, s79
        s_waitcnt vmcnt(0)
        v_readfirstlane_b32 s80, v3
        s_nop 1
        s_cmp_lg_u32 s79, s80
        s_cbranch_scc1 L_noygo{k}
        s_add_u32 s78, s78, {WS_YG-WS_YC-2048*0}
        v_mov_b32 v3, 1
        buffer_store_dword v3, v2, {S(sWS,4)}, s78 offen sc1
        L_noygo{k}:""")
    e("L_noysig:\ns_mov_b64 exec, -1")
def y_consume():
    e(f"s_cmp_lg_u32 {S(sQ)}, 0\ns_cbranch_scc1 L_y_wait\ns_lshl_b32 s78, {S(sHG)}, 8\ns_add_u32 s78, s78, {WS_YG}\nv_mov_b32 v2, 0")
    poll("L_poll3",2,sWS,"s78",1)
    e(f"v_mov_b32 v2, {L_FLAG+16}\nv_mov_b32 v3, 1\nds_write_b32 v2, v3\ns_branch L_y_go\nL_y_wait:")
    lds_spin("L_spin3",L_FLAG+16,1)
    e("L_y_go:")
    stamp("y_polled")
    e(f"""s_mul_i32 s76, {S(sHG)}, {80*UTP}
    s_lshl_b32 s77, {S(sRB)}, 7
    s_add_u32 s76, s76, s77
    s_lshl_b32 s77, {S(sQ)}, 5
    s_add_u32 s76, s76, s77
    s_add_u32 s76, s76, {WS_YT}
    s_mul_i32 s77, {S(sQ)}, 2560
    s_add_u32 s77, s77, {L_YC}
    v_lshrrev_b32 v2, 1, v0
    v_mul_u32_u24 v2, {UTP}, v2
    v_and_b32 v3, 1, v0
    v_lshlrev_b32 v3, 4, v3
    v_add_u32 v2, v2, v3""")
    for i in range(3):
        if i==2: e("s_mov_b32 exec_hi, 0")
        e(f"s_add_u32 m0, s77, {1024*i}\ns_add_u32 s78, s76, {32*UTP*i}"); dma(2,sWS,"s78",sc1=True)
    e("s_mov_b32 exec_hi, -1")
    e(f"""v_lshrrev_b32 v2, 2, v0
    v_lshlrev_b32 v2, 5, v2
    v_and_b32 v3, 3, v0
    v_lshlrev_b32 v3, 3, v3
    v_add3_u32 v4, v2, v3, s77
    v_and_b32 v2, 15, v0
    v_mul_u32_u24 v2, 160, v2
    v_lshrrev_b32 v3, 4, v0
    v_lshlrev_b32 v3, 3, v3
    v_add3_u32 v5, v2, v3, s77
    v_add_u32 v6, s77, {V(vL16)}
    s_lshl_b32 s76, {S(sRB)}, 6
    s_lshl_b32 s78, {S(sQ)}, 4
    s_add_u32 s76, s76, s78
    s_mul_i32 s76, s76, 2560
    s_mul_i32 s78, {S(sHG)}, 160
    s_add_u32 s76, s76, s78
    s_add_u32 s76, s76, 1280""")
    for p in range(3):
        e(f"v_add_u32 v2, {64*p}, v0"); div10(3,2)
        e(f"v_mul_u32_u24 v3, 1280, v3\nv_add_u32 v{40+p}, v3, v{161+p}")
    e("s_waitcnt vmcnt(0)")
    for k in range(5): e(f"ds_read_b64_tr_b16 {V(16+2*k,2)}, v4 offset:{512*k}")
    e("s_waitcnt lgkmcnt(0)")
    for k in range(5): e(f"ds_write_b64 v5, {V(16+2*k,2)} offset:{32*k}")
    for p in range(3): e(f"ds_read_b128 {V(28+4*p,4)}, v6 offset:{1024*p}")
    for p in range(3):
        e(f"s_waitcnt lgkmcnt({2-p})")
        if p==2: e("s_mov_b32 exec_hi, 0")
        e(f"buffer_store_dwordx4 {V(28+4*p,4)}, v{40+p}, {S(sOUT,4)}, s76 offen {['','sc1','nt','sc0 sc1'][OPT['ysc']]}")
    e("s_mov_b32 exec_hi, -1")
def wo_patterns(base):
    for p in range(5):
        e(f"v_add_u32 v2, {64*p}, v0"); div10(3,2)
        e(f"""v_mul_u32_u24 v4, 10, v3
        v_sub_u32 v4, v2, v4
        v_lshlrev_b32 v4, 4, v4
        v_mul_u32_u24 v3, 1280, v3
        v_add_u32 {V(base+p)}, v3, v4""")
def wo_prefetch():
    e(f"""s_lshr_b32 s84, s2, 3
    s_lshl_b32 s84, s84, 2
    s_add_u32 s84, s84, {S(sQ)}
    s_mul_i32 s84, s84, 6400
    v_lshlrev_b32 v2, 7, v0
    s_mov_b32 exec_hi, 0x3ffff
    buffer_load_dword v14, v2, {S(sWO,4)}, s84 offen
    s_mov_b32 exec_hi, -1""")
    if OPT['touch']:
        e(f"""s_mul_i32 s84, {S(sRB)}, 81920
        s_mul_i32 s85, {S(sHG)}, 10240
        s_add_u32 s84, s84, s85
        s_mul_i32 s85, {S(sQ)}, 2560
        s_add_u32 s84, s84, s85
        s_add_u32 s84, s84, {WS_O}
        s_mov_b32 exec_hi, 0
        s_mov_b32 exec_lo, 0xfffff
        buffer_load_dword v14, v2, {S(sWS,4)}, s84 offen
        s_mov_b64 exec, -1""")
def wo_piece(pat, step_expr_reg, lds_reg):
    e(f"s_mul_i32 s84, s{step_expr_reg}, {32*1280}\ns_mul_i32 s85, {S(sHG)}, 160\ns_add_u32 s84, s84, s85")
    for p in range(5):
        e(f"s_add_u32 m0, s{lds_reg}, {1024*p}\ns_nop 0"); dma(pat+p,sWO,"s84")

SA,SB,PA,PB,OA,OB,K1,K2=32,48,64,72,80,96,112,116
VB=[120,128]; NA,NB=136,152
def valu_half(Sv,Pv):
    ex=[f"v_exp_f32 v{Sv+i}, v{Sv+i}" for i in range(16)]
    c=[f"v_cvt_pk_bf16_f32 v{Pv+i}, v{Sv+2*i}, v{Sv+2*i+1}" for i in range(8)]
    return [ex[0],ex[1],ex[2],ex[3],ex[4],ex[5],c[0],ex[6],ex[7],c[1],ex[8],ex[9],c[2],ex[10],ex[11],c[3],ex[12],ex[13],c[4],ex[14],ex[15],c[5],c[6],c[7]]
def qk(Sm,q1,q2,C=None):
    return [f"v_mfma_f32_32x32x16_bf16 {V(Sm,16)}, {V(K1,4)}, {V(q1,4)}, {'0' if C is None else V(C,16)}",
            f"v_mfma_f32_32x32x8bf16_1k {V(Sm,16)}, {V(K2,2)}, {V(q2,2)}, {V(Sm,16)}"]
def pv(Om,Pm,Vb,first=False):
    return [f"v_mfma_f32_32x32x16_bf16 {V(Om,16)}, {V(Vb+4*i,4)}, {V(Pm+4*i,4)}, {'0' if (first and i==0) else V(Om,16)}" for i in range(2)]
def kreads(t):
    sl=(t>>3)&1; o=(t&7)*TILE
    return [f"ds_read_b128 {V(K1,4)}, {V(vKV[sl])} offset:{o}", f"ds_read_b64 {V(K2,2)}, {V(vK2[sl])} offset:{o}"]
def vreads(t):
    sl=(t>>3)&1; o=(t&7)*TILE
    return [f"ds_read_b128 {V(VB[t&1]+4*i,4)}, {V(vVa[sl])} offset:{o+i*(VF1-VF0)}" for i in range(2)]
POS=(OPT['p0'],OPT['p1'],OPT['p2'],OPT['p3'])
def phase(Sv,Pv,mf,after,pre):
    v=valu_half(Sv,Pv)
    for i in range(len(v)):
        for k,p in enumerate(POS):
            if p==i:
                if pre.get(k): e(pre[k])
                if mf[k]: e(mf[k])
                for x in after.get(k,[]): e(x)
        e(v[i])
RINGS=[]
def ring_stubs():
    for st in RINGS:
        e(f"""L_ring{st}:
        s_mov_b32 s{sSpin}, 0
        L_ring{st}_sp:
        ds_read_b32 v2, v8 offset:{4*(st+1)}
        s_add_u32 s{sSpin}, s{sSpin}, 1
        s_cmp_gt_u32 s{sSpin}, 0x1000000
        s_cbranch_scc1 L_ring{st}_ok
        s_waitcnt lgkmcnt(0)
        v_cmp_eq_u32 vcc, 4, v2
        s_cbranch_vccnz L_ring{st}_ok
        s_sleep 1
        s_branch L_ring{st}_sp""")
def attention():
    e(f"v_mov_b32 v8, {L_FLAG+96}\nv_mov_b32 v9, 1\ns_waitcnt lgkmcnt(0)")
    for x in qk(SA,Qa1,Qa2): e(x)
    nop(12)
    stamp("attn_start")
    for t in range(32):
        mf=qk(SB,Qb1,Qb2)+(pv(OB,PB,VB[(t-1)&1],t==1) if t>=1 else [None]*2)
        after={}; pre={}
        if t<31:
            kr=kreads(t+1); after[0]=[kr[0]]; after[1]=[kr[1]]
        if t in (7,15,23):
            st=t>>3
            after[0]=["s_waitcnt lgkmcnt(0)",f"s_mov_b64 exec, 1\nds_add_u32 v8, v9 offset:{16+4*st}\ns_mov_b64 exec, -1\nv_cmp_eq_u32 vcc, 4, v2\ns_cbranch_vccz L_ring{st}\nL_ring{st}_ok:"]+after[0]
            RINGS.append(st)
        if OPT['pa']==1: pre[0]=f"s_setprio {1+(t&1)}"
        g=OPT['pg']
        if g and t%g==0: pre[0]=f"s_cmp_eq_u32 {S(sB)}, {(t//g)&1}\ns_setprio 1\ns_cbranch_scc1 L_pr{t}\ns_setprio 2\nL_pr{t}:"
        if OPT['pa']==5: pre[0]="s_setprio 2"
        if OPT['pa']==2 and t%8==0: pre[0]=f"s_setprio {1+(((t>>3)&1))}"
        phase(SA,PA,mf,after,pre)
        mf=(qk(SA,Qa1,Qa2) if t<31 else [None]*2)+pv(OA,PA,VB[t&1],t==0)
        after={}; pre={}
        pre[0]="s_waitcnt lgkmcnt(0)"
        if OPT['pa']==5: pre[0]="s_setprio 1\n"+pre[0]
        if t<31:
            vr=vreads(t+1); after[0]=[vr[0]]; after[1]=[vr[1]]
            if t in (6,14,22): after[2]=[f"ds_read_b32 v2, v8 offset:{4*((t>>3)+1)}"]
        phase(SB,PB,mf,after,pre)
    nop(2)
    for x in pv(OB,PB,VB[1]): e(x)
def fallback():
    e("s_waitcnt lgkmcnt(0)")
    for k in range(3): lds_inc(L_FLAG+112+4*k)
    e(f"""s_mul_i32 s88, {S(sB)}, {32*TILE}
    s_add_u32 s88, s88, {WS_KV}
    v_and_b32 v3, 31, v0
    v_lshlrev_b32 v4, 3, v3
    v_lshrrev_b32 v2, 5, v0
    v_min_u32 v3, 21, v3
    v_mul_u32_u24 v2, 22, v2
    v_add_u32 v3, v3, v2
    v_lshlrev_b32 v5, 4, v3
    v_mov_b32 v6, 0xff800000
    v_mov_b32 v7, 0xff800000
    s_waitcnt lgkmcnt(0)""")
    def kload():
        e(f"buffer_load_dwordx4 {V(K1,4)}, {V(vL16)}, {S(sWS,4)}, s84 offen sc1\nbuffer_load_dwordx2 {V(K2,2)}, v4, {S(sWS,4)}, s84 offen offset:{K2O} sc1")
    e(f"s_mov_b32 s84, s88\ns_mov_b32 s{sLoop}, 32\nL_fb1:"); b0=len(L)
    kload(); e("s_waitcnt vmcnt(0)")
    for x in qk(SA,Qa1,Qa2)+qk(SB,Qb1,Qb2): e(x)
    nop(12)
    for Sm,r in ((SA,6),(SB,7)):
        for i in range(8): e(f"v_max3_f32 v{r}, v{r}, v{Sm+2*i}, v{Sm+2*i+1}")
    e(f"s_add_u32 s84, s84, {TILE}"); loop_end("L_fb1",b0)
    for r in (6,7): e(f"v_mov_b32 v8, v{r}\ns_nop 1\nv_permlane32_swap_b32 v{r}, v8\ns_nop 1\nv_max_f32 v{r}, v{r}, v8")
    e(f"""s_lshl_b32 s76, {S(sWv)}, 8
    s_add_u32 s77, s76, {L_FBX}
    v_add_u32 v3, s77, v4
    ds_write_b64 v3, v[6:7]
    s_xor_b32 s76, s76, 1024
    s_add_u32 s77, s76, {L_FBX}
    v_add_u32 v3, s77, v4
    v_mov_b32 v5, v3
    s_waitcnt lgkmcnt(0)""")
    lds_inc(L_FLAG+24); lds_spin("L_fbx",L_FLAG+24,8)
    e(f"""ds_read_b64 v[8:9], v5
    v_and_b32 v3, 31, v0
    v_lshrrev_b32 v2, 5, v0
    v_min_u32 v3, 21, v3
    v_mul_u32_u24 v2, 22, v2
    v_add_u32 v3, v3, v2
    v_lshlrev_b32 v5, 4, v3
    s_waitcnt lgkmcnt(0)
    v_max_f32 v6, v6, v8
    v_max_f32 v7, v7, v9""")
    for i in range(16): e(f"v_sub_f32 v{NA+i}, 0, v6\nv_sub_f32 v{NB+i}, 0, v7\nv_mov_b32 v{OA+i}, 0\nv_mov_b32 v{OB+i}, 0")
    e(f"s_mov_b32 s84, s88\ns_mov_b32 s{sLoop}, 32\nL_fb2:"); b0=len(L)
    kload()
    for i in range(2): e(f"buffer_load_dwordx4 {V(VB[0]+4*i,4)}, v5, {S(sWS,4)}, s84 offen offset:{VF0+i*(VF1-VF0)} sc1")
    e("s_waitcnt vmcnt(0)")
    for x in qk(SA,Qa1,Qa2,NA)+qk(SB,Qb1,Qb2,NB): e(x)
    nop(12)
    for Sm,Pm,Om in ((SA,PA,OA),(SB,PB,OB)):
        for x in valu_half(Sm,Pm): e(x)
        nop(2)
        for x in pv(Om,Pm,VB[0]): e(x)
    e(f"s_add_u32 s84, s84, {TILE}"); loop_end("L_fb2",b0)

def tail():
    EX=L_R[1]; OS=L_R[1]+24576
    e(f"s_cmp_eq_u32 {S(sB)}, 0\ns_cbranch_scc1 L_noswap"); nop(12)
    for i in range(12): e(f"v_swap_b32 v{OA+i}, v{OB+i}")
    e("L_noswap:")
    e(f"""s_mul_i32 s76, {S(sWv)}, 3072
    s_add_u32 s76, s76, {EX}
    v_add_u32 v2, s76, {V(vL16)}
    s_xor_b32 s77, {S(sWv)}, 4
    s_mul_i32 s77, s77, 3072
    s_add_u32 s77, s77, {EX}
    v_add_u32 v3, s77, {V(vL16)}"""); nop(5)
    e("s_barrier")
    stamp("f1")
    for i in range(3): e(f"ds_write_b128 v2, {V(OB+4*i,4)} offset:{1024*i}")
    e("s_waitcnt lgkmcnt(0)\ns_barrier")
    for i in range(3): e(f"ds_read_b128 {V(32+4*i,4)}, v3 offset:{1024*i}")
    e("s_waitcnt lgkmcnt(0)")
    e(f"v_add_f32 v{OA+8}, v{OA+8}, v40")
    for i in list(range(8))+[9,10,11]: e(f"v_add_f32 v{OA+i}, v{OA+i}, v{32+i}")
    e(f"v_mov_b32 v4, v{OA+8}\nv_mov_b32 v5, v{OA+8}\ns_nop 1\nv_permlane32_swap_b32 v4, v5\ns_nop 1\nv_rcp_f32 v5, v5\ns_nop 0")
    for i in range(12): e(f"v_mul_f32 v{OA+i}, v{OA+i}, v5")
    for i in range(6): e(f"v_cvt_pk_bf16_f32 v{32+i}, v{OA+2*i}, v{OA+2*i+1}")
    e("s_cmp_eq_u32 s101, 0\ns_cbranch_scc1 L_ost_far")
    for i,a in enumerate((vOA0,vOA1,vOA2)): e(f"buffer_store_dwordx2 {V(32+2*i,2)}, {V(a)}, {S(sWS,4)}, 0 offen")
    e("s_branch L_ost_j\nL_ost_far:")
    for i,a in enumerate((vOA0,vOA1,vOA2)): e(f"buffer_store_dwordx2 {V(32+2*i,2)}, {V(a)}, {S(sWS,4)}, 0 offen sc1")
    e("L_ost_j:")
    stamp("o_issue")
    WA,WB,WC,vOl,vOs,vOr,vOg,vFl=10,11,9,12,13,14,15,8
    e(selb(76,(L_R[0],L_R[0]+20480))); e(selb(77,(RG[0],RG[0]+30720))); e(selb(78,(RG[0]+5120,RG[1])))
    e(f"""v_lshrrev_b32 v2, 5, v0
    v_lshlrev_b32 v2, 4, v2
    v_bfe_u32 v3, v0, 4, 1
    v_lshlrev_b32 v3, 2, v3
    v_bfe_u32 v4, v0, 2, 2
    v_add3_u32 v2, v2, v3, v4
    v_mul_u32_u24 v2, 160, v2
    v_and_b32 v3, 3, v0
    v_lshlrev_b32 v3, 3, v3
    v_add3_u32 {V(WA)}, v2, v3, s76
    v_add3_u32 {V(WB)}, v2, v3, s77
    v_add3_u32 {V(WC)}, v2, v3, s78""")
    WF=56; OF=16; ACC=136
    def wr(sp,slot):
        base,o=(WA,sp*5120) if sp<4 else (WB,0) if sp==4 else (WC,(sp-5)*5120)
        r=[]
        for ct in range(5):
            b=WF+20*slot+4*ct
            r+=[f"ds_read_b64_tr_b16 {V(b,2)}, {V(base)} offset:{o+32*ct}", f"ds_read_b64_tr_b16 {V(b+2,2)}, {V(base)} offset:{o+32*ct+1280}"]
        return r
    e(f"""s_mul_i32 s76, {S(sRB)}, 81920
    s_mul_i32 s77, {S(sQ)}, 20480
    s_add_u32 s76, s76, s77
    s_mul_i32 s77, {S(sB)}, 10240
    s_add_u32 s76, s76, s77
    s_add_u32 s76, s76, {WS_O}
    v_add_u32 {V(vOl)}, s76, {V(vL16)}
    s_lshl_b32 s76, {S(sQ)}, 4
    v_and_b32 v2, 15, v0
    v_add_u32 v2, s76, v2
    v_mul_u32_u24 v2, 160, v2
    v_lshrrev_b32 v3, 4, v0
    v_lshlrev_b32 v3, 3, v3
    v_add_u32 v2, v2, v3
    v_add_u32 {V(vOs)}, {OS}, v2
    s_mul_i32 s76, {S(sWv)}, 960
    s_add_u32 s76, s76, {OS}
    v_add_u32 {V(vOr)}, s76, {V(vL16)}""")
    div10(2,0)
    e(f"""v_mul_u32_u24 v3, 10, v2
    v_sub_u32 v3, v0, v3
    v_lshlrev_b32 v3, 4, v3
    v_mul_u32_u24 v2, 2560, v2
    v_add_u32 {V(vOg)}, v2, v3
    v_and_b32 v2, 7, v0
    v_lshlrev_b32 {V(vFl)}, 2, v2""")
    e("s_waitcnt vmcnt(0)\ns_barrier")
    stamp("o_acked")
    e(f"""s_cmp_lg_u32 {S(sWv)}, 0
    s_cbranch_scc1 L_noflag
    s_lshl_b32 s76, {S(sRB)}, 6
    s_lshl_b32 s77, {S(sHG)}, 2
    s_add_u32 s76, s76, s77
    s_add_u32 s76, s76, {WS_OF}
    s_getreg_b32 s77, hwreg(HW_REG_XCC_ID)
    s_or_b32 s77, s77, 0x80000000
    v_mov_b32 v2, 0
    v_mov_b32 v3, s77
    s_mov_b64 exec, 1
    s_cmp_eq_u32 s101, 0
    s_cbranch_scc1 L_ofl_far
    buffer_store_dword v3, v2, {S(sWS,4)}, s76 offen
    s_branch L_ofl_j
    L_ofl_far:
    buffer_store_dword v3, v2, {S(sWS,4)}, s76 offen sc1
    L_ofl_j:
    s_mov_b64 exec, -1
    L_noflag:""")
    for sp in range(4):
        for x in wr(sp,sp): e(x)
    e(f"s_cmp_lg_u32 {S(sWv)}, 0\ns_cbranch_scc1 L_nopoll2\ns_lshl_b32 s76, {S(sRB)}, 6\ns_add_u32 s76, s76, {WS_OF}")
    poll("L_poll2",vFl,sWS,"s76","0x80000000")
    e("L_nopoll2:\ns_barrier")
    stamp("polled")
    for sp in range(10):
        if sp in (4,8): e(f"v_add_u32 {V(vOl)}, 4096, {V(vOl)}")
        e(f"buffer_load_dwordx4 {V(OF+4*sp,4)}, {V(vOl)}, {S(sWS,4)}, 0 offen offset:{1024*(sp%4)} sc1")
    for sp in range(10):
        slot=sp%4
        w=f"s_waitcnt vmcnt({9-sp})"
        if sp==0: w+=" lgkmcnt(0)"
        elif sp>=4: w+=" lgkmcnt(%d)"%(0 if sp==9 else 10 if sp>=8 else 15)
        e(w)
        if 4<=sp<8: pass
        for ct in range(5):
            e(f"v_mfma_f32_16x16x32_bf16 {V(ACC+4*ct,4)}, {V(WF+20*slot+4*ct,4)}, {V(OF+4*sp,4)}, {'0' if sp==0 else V(ACC+4*ct,4)}")
        if sp<6:
            for x in wr(sp+4,slot): e(x)
    stamp("oproj_done")
    e(f"""s_mul_i32 s76, {S(sWv)}, 3072
    s_add_u32 s76, s76, {EX}
    v_add_u32 v2, s76, {V(vL16)}
    s_xor_b32 s77, {S(sWv)}, 4
    s_mul_i32 s77, s77, 3072
    s_add_u32 s77, s77, {EX}
    v_add_u32 v3, s77, {V(vL16)}
    s_cmp_eq_u32 {S(sB)}, 0
    s_cbranch_scc0 L_red_b""")
    def red(send,keep):
        for i,ct in enumerate(send): e(f"ds_write_b128 v2, {V(ACC+4*ct,4)} offset:{1024*i}")
        e("s_waitcnt lgkmcnt(0)\ns_barrier")
        for i,ct in enumerate(keep): e(f"ds_read_b128 {V(16+4*i,4)}, v3 offset:{1024*i}")
        for i,ct in enumerate(keep):
            e(f"s_waitcnt lgkmcnt({len(keep)-1})")
            for r in range(4): e(f"v_add_f32 v{ACC+4*ct+r}, v{ACC+4*ct+r}, v{16+4*i+r}")
            e(f"v_cvt_pk_bf16_f32 v{32+2*i}, v{ACC+4*ct}, v{ACC+4*ct+1}\nv_cvt_pk_bf16_f32 v{33+2*i}, v{ACC+4*ct+2}, v{ACC+4*ct+3}")
            e(f"ds_write_b64 {V(vOs)}, {V(32+2*i,2)} offset:{32*ct}")
    nop(8); red((3,4),(0,1,2)); e("s_branch L_red_j\nL_red_b:"); nop(8); red((0,1,2),(3,4)); e("L_red_j:")
    e(f"""s_lshl_b32 s76, {S(sRB)}, 6
    s_mul_i32 s77, {S(sWv)}, 6
    s_add_u32 s76, s76, s77
    s_mul_i32 s76, s76, 2560
    s_mul_i32 s77, {S(sHG)}, 160
    s_add_u32 s76, s76, s77
    s_add_u32 s77, s76, {48*2560}
    s_waitcnt lgkmcnt(0)
    s_barrier
    ds_read_b128 v[16:19], {V(vOr)}
    ds_read_b128 v[20:23], {V(vOr)} offset:{8*960}
    s_mov_b32 exec_hi, 0x0fffffff
    s_waitcnt lgkmcnt(1)
    buffer_store_dwordx4 v[16:19], {V(vOg)}, {S(sOUT,4)}, s76 offen {['','sc1','nt','sc0 sc1'][OPT['asc']]}
    s_cmp_ge_u32 {S(sWv)}, 3
    s_cbranch_scc1 {'L_fin' if OPT['stamp'] else 'L_exit'}
    s_cmp_eq_u32 {S(sWv)}, 2
    s_cselect_b32 exec_hi, 0xff, exec_hi
    s_waitcnt lgkmcnt(0)
    buffer_store_dwordx4 v[20:23], {V(vOg)}, {S(sOUT,4)}, s77 offen {['','sc1','nt','sc0 sc1'][OPT['asc']]}""")

def main():
    entry()
    if OPT['stamp']: e("v_mov_b32 v167, 0")
    stamp("issued0")
    e(f"s_barrier\ns_cmp_eq_u32 {S(sRole)}, 0\ns_cbranch_scc1 L_Q0")
    e(f"s_setprio 1\ns_mov_b32 s76, {WS_GO}\nv_mov_b32 v2, 0\nbuffer_load_dwordx2 v[164:165], v2, {S(sWS,4)}, s76 offen sc1")
    kv_addr(); chunk_addr(); chunk_next(); chunk_next(); attn_addr()
    srd(sWO,12,819200); srd(sOUT,28,5242880)
    e("s_waitcnt vmcnt(0)"); lds_inc(L_FLAG+52); lds_spin("L_kvin",L_FLAG+52,8)
    stamp("beta_a")
    kv_proj()
    stamp("kv_done")
    if OPT['kack1']:
        e("s_waitcnt vmcnt(0)"); acked(); stamp("k_acked")
    lds_spin("L_kvfree",L_FLAG+56,4)
    chunk_dma(SLOT[2])
    stamp("c2_issued")
    if not OPT['kack1']:
        e("s_waitcnt vmcnt(10)"); acked(); stamp("k_acked")
    lds_spin("L_c0",L_FLAG+64,4)
    chunk_dma(SLOT[0])
    e("s_waitcnt vmcnt(10)"); lds_inc(L_FLAG+32+8)
    stamp("c2_landed")
    lds_spin("L_c1",L_FLAG+68,4)
    chunk_dma(SLOT[1])
    e("s_waitcnt vmcnt(10)"); lds_inc(L_FLAG+32+12)
    e("s_waitcnt vmcnt(0)"); lds_inc(L_FLAG+32+16)
    stamp("c4_landed")
    lds_spin("L_c2",L_FLAG+72,4)
    e(f"""s_cmp_lg_u32 {S(sQ)}, 0
    s_cbranch_scc1 L_k_wait
    s_mov_b32 s{sSpin}, 0
    s_mov_b32 s76, {WS_GO}
    v_mov_b32 v2, 0
    L_poll1:
    buffer_load_dwordx2 v[4:5], v2, {S(sWS,4)}, s76 offen sc1
    s_add_u32 s{sSpin}, s{sSpin}, 1
    s_cmp_gt_u32 s{sSpin}, 0x40000
    s_cbranch_scc1 L_poll1_done
    s_waitcnt vmcnt(0)
    v_cmp_eq_u32 vcc, v4, v164
    v_cmp_eq_u32 s[78:79], v5, v165
    s_nop 1
    s_or_b64 vcc, vcc, s[78:79]
    s_cbranch_vccz L_poll1_done
    s_sleep {OPT['sl']}
    s_branch L_poll1
    L_poll1_done:""")
    class_to_lds()
    e(f"""v_mov_b32 v2, {L_FLAG+4}
    v_mov_b32 v3, 1
    ds_write_b32 v2, v3
    s_branch L_k_go
    L_k_wait:""")
    lds_spin("L_spin1",L_FLAG+4,1)
    e("L_k_go:")
    stamp("polled1")
    xcc_load()
    stage_dma(0)
    stamp("st0_issued")
    e("s_waitcnt vmcnt(11)"); xcc_reduce()
    e("s_waitcnt vmcnt(0) lgkmcnt(0)\ns_barrier")
    stamp("beta_q")
    e(f"""s_mul_i32 s76, {S(sQ)}, {QXP}
    s_add_u32 s76, s76, {L_QX}
    v_add_u32 v2, s76, {V(vL16)}
    ds_read_b128 v[10:13], v2
    ds_read_b128 v[14:17], v2 offset:1024
    ds_read_b128 v[18:21], v2 offset:2048
    s_waitcnt lgkmcnt(0)""")
    lds_inc(L_FLAG+80)
    e("s_branch L_A1")
    e("L_Q0:")
    chunk_addr()
    if not OPT['late0']: chunk_dma(SLOT[0])
    qproj_addr(); attn_addr()
    srd(sWO,12,819200); srd(sOUT,28,5242880)
    for i in range(32): e(f"v_mov_b32 v{32+i}, 0")
    e(f"s_mul_i32 s76, {S(sQ)}, {QXP}\ns_add_u32 s76, s76, {L_QX}\nv_add_u32 v8, s76, {V(vL16)}")
    e(f"s_waitcnt vmcnt({0 if OPT['late0'] else 10})"); lds_inc(L_FLAG+52)
    if OPT['late0']==2: lds_spin("L_qkvf",L_FLAG+56,4)
    if OPT['late0']: chunk_dma(SLOT[0])
    if OPT['late0']==3: lds_spin("L_qkvf",L_FLAG+56,4)
    chunk_dma(SLOT[1])
    stamp("c1_issued")
    e("s_waitcnt vmcnt(10)"); lds_inc(L_FLAG+32)
    stamp("c0_landed")
    e(f"s_setprio {OPT['qp']}")
    L.append("    ;QPROJ")
    q_proj()
    stamp("qproj_done")
    e("s_barrier")
    stamp("beta_q")
    e("L_A1:")
    e(f"v_mov_b32 v2, {L_KB}\nds_read_b64 v[8:9], v2\nds_read_b128 v[4:7], v2 offset:16")
    for x in kreads(0)+vreads(0): e(x)
    e("s_setprio 1")
    if OPT['pa']==4: e(f"s_cmp_eq_u32 {S(sB)}, 0\ns_cbranch_scc1 L_nop2\ns_setprio 2\nL_nop2:")
    e(f"""s_waitcnt lgkmcnt(4)
    v_max3_u32 v4, v4, v5, v6
    v_max_u32 v4, v4, v7
    v_readfirstlane_b32 s101, v9
    v_cmp_nle_f32 vcc, v4, v8
    s_cbranch_vccnz L_fallback""")
    attention()
    e("L_tail:")
    stamp("attn_done")
    tail()
    if OPT['stamp']:
        e("L_fin:\ns_waitcnt vmcnt(0)"); stamp("end"); stamp_dump()
    e("L_exit:\ns_endpgm")
    ring_stubs()
    e("L_fallback:"); fallback(); e("s_branch L_tail")
    e("L_B0:")
    if OPT['stamp']: e("v_mov_b32 v167, 0")
    e(f"s_cmp_lt_u32 {S(sQ)}, 3\ns_cselect_b32 s101, {S(sConv)}, 0\ns_waitcnt lgkmcnt(0)")
    srd(sU,14,2621440)
    u_tile_dma()
    e("s_cmp_eq_u32 s101, 0\ns_cbranch_scc1 L_noparam")
    chan(82,sQ)
    e(f"""s_lshl_b32 s83, s82, 8
    v_lshlrev_b32 v2, 2, v0
    v_add_u32 v2, s83, v2
    s_lshl_b32 s82, s82, 1
    v_mov_b32 v3, s82
    global_load_dword {V(vLA)}, v2, s[16:17]
    global_load_dword {V(vAI)}, v2, s[18:19]
    global_load_dword {V(vCR)}, v2, s[20:21]
    global_load_dword {V(vCI)}, v2, s[22:23]
    global_load_ushort {V(vLDT)}, v3, s[24:25]
    global_load_ushort {V(vD)}, v3, s[26:27]
    L_noparam:""")
    srd(sWS,32,WS_SIZE)
    e(f"s_mov_b32 s76, {WS_GO}\nv_mov_b32 v2, 0\nbuffer_load_dwordx2 v[164:165], v2, {S(sWS,4)}, s76 offen sc1")
    stamp("issued0")
    e("s_barrier")
    u_addr()
    srd(sWO,12,819200); srd(sOUT,28,5242880); srd(sDBG,30,256)
    e("s_setprio 3\ns_waitcnt vmcnt(0)"); lds_inc(L_FLAG+60)
    u_part()
    lds_inc(L_FLAG+84)
    stamp("ut_done")
    e("s_cmp_eq_u32 s101, 0\ns_cbranch_scc1 L_B_nogen")
    e(f"s_setprio {OPT['kp']}")
    kgen_dt(); kgen_setup()
    lds_spin("L_spinD",L_FLAG+84,4)
    stamp("kg_begin")
    e(f"s_mov_b32 s{sLoop}, 2\nL_kg:")
    kB()
    if OPT['ackat']==0: e(f"s_cmp_lg_u32 s{sLoop}, 2\ns_cbranch_scc1 L_kg_ack\ns_waitcnt vmcnt(0)"); lds_inc(L_FLAG+20); stamp("b_acked"); e("L_kg_ack:")
    kA0()
    if OPT['ackat']==1: e(f"s_cmp_lg_u32 s{sLoop}, 2\ns_cbranch_scc1 L_kg_ack\ns_waitcnt vmcnt(0)"); lds_inc(L_FLAG+20); stamp("b_acked"); e("L_kg_ack:")
    kA12(True)
    loop_end("L_kg",len(L))
    kgen_finish()
    stamp("kgen_done")
    byq(95,L_CH); expand_pre()

    e("s_branch L_B_gen\nL_B_nogen:\ns_waitcnt vmcnt(0)")
    lds_inc(L_FLAG+20)
    e(f"s_cmp_lg_u32 {S(sQ)}, 3\ns_cbranch_scc1 L_nosig")
    sig=((20,8,0,0,164,7,"k"),)
    e("s_and_b32 s76, s2, 1\ns_lshl_b32 s77, s76, 7\nv_mov_b32 v6, 1\nv_mov_b32 v7, 1\nv_mov_b32 v5, 0")
    for word,cnt,dw,go,r0,rv,tag in sig:
        lds_spin(f"L_spinS{tag}",L_FLAG+word,cnt)
        stamp(tag+"_all")
        if tag=="k":
            e(f"""v_mov_b32 v2, {L_FLAG+128}
            ds_read_b128 v[8:11], v2
            s_mov_b32 s78, {fb(128.0)}
            s_mov_b32 s79, {fb(1024.0)}
            s_mov_b32 s80, {fb(8192.0)}
            s_mov_b32 s81, {fb(2.0**32)}
            s_waitcnt lgkmcnt(0)
            v_add_f32 v8, v8, v9
            v_max_u32 v10, v10, v11
            v_cmp_nle_f32 s[82:83], v8, s78
            v_cmp_nle_f32 s[84:85], v8, s79
            v_cmp_nle_f32 s[86:87], v8, s80
            v_cmp_nle_f32 s[88:89], v10, s81
            v_mov_b32 v9, 0x100
            v_mov_b32 v10, 0x10000
            v_mov_b32 v11, 0x1000000
            s_or_b64 s[86:87], s[86:87], s[88:89]
            v_cndmask_b32 v9, 0, v9, s[82:83]
            v_cndmask_b32 v10, 0, v10, s[84:85]
            v_cndmask_b32 v11, 0, v11, s[86:87]
            v_add3_u32 v7, v9, v10, v11
            v_add_u32 v7, 1, v7
            v_mov_b32 v12, v7""")
        e(f"s_mov_b64 exec, 1\nbuffer_atomic_add v{rv}, v5, {S(sDBG,4)}, s77 offen offset:{dw} sc0 sc1\ns_mov_b64 exec, -1")
    e("s_waitcnt vmcnt(0)\ns_cmp_eq_u32 s76, 0\ns_cselect_b64 vcc, -1, 0\ns_lshl_b32 s76, s76, 2\ns_mov_b64 exec, 1")
    for word,cnt,dw,go,r0,rv,tag in sig[::-1]:
        e(f"""v_and_b32 v3, 127, v{rv}
        s_add_u32 s78, s76, {WS_GO+go}
        v_readfirstlane_b32 s77, v3
        v_cndmask_b32 v3, v{r0+1}, v{r0}, vcc
        {"v_add_u32 v7, v7, v12" if tag=="k" else ""}
        {"v_or_b32 v7, 0xff, v7" if tag=="k" else "v_mov_b32 v6, -1"}
        v_xor_b32 v3, v3, v{rv}
        s_cmp_lg_u32 s77, 127
        s_cbranch_scc1 L_nogo{tag}
        buffer_store_dword v3, v5, {S(sWS,4)}, s78 offen sc1
        L_nogo{tag}:""")
    e("s_mov_b64 exec, -1")
    stamp("signalled")
    e("L_nosig:")
    byq(95,L_CH)
    e("L_B_gen:")
    e(f"s_cmp_eq_u32 {S(sConv)}, 0\ns_cbranch_scc1 L_B_noaddr")
    conv_addr(); conv7_addr()
    e("L_B_noaddr:\ns_setprio 3\ns_barrier")
    e(f"v_mov_b32 v8, {L_FLAG+100}\nv_mov_b32 v9, 1\ns_mov_b32 s{sSt}, 1\ns_mov_b32 s{sPend}, 1")
    e("s_cmp_eq_u32 s101, 0\ns_cbranch_scc1 L_B_nou")
    lds_spin("L_spinQ",L_FLAG+80,4)
    u_dma()
    expand_write()
    stamp("exp_written")
    e("L_B_nou:\ns_getpc_b64 s[90:91]\ns_add_u32 s90, s90, 12\ns_addc_u32 s91, s91, 0\ns_branch L_stage_all")
    e(f"s_cmp_eq_u32 {S(sConv)}, 0\ns_cbranch_scc1 L_B_plain\ns_cmp_eq_u32 {S(sQ)}, 3\ns_cbranch_scc1 L_B3")
    stamp("st1_issued")
    e("s_waitcnt vmcnt(11)"); u_patch()
    e(f"""v_mov_b32 v2, {L_FLAG+12}
    v_mov_b32 v3, 1
    s_waitcnt lgkmcnt(0)
    ds_add_u32 v2, v3
    s_setprio {OPT['bprio']}""")
    stamp("conv_start")
    wo_prefetch()
    conv(8)
    e("s_setprio 3"); y_publish(False)
    stamp("conv_done")
    e("s_branch L_B_sig\nL_B3:")
    wo_prefetch()
    lds_spin("L_spin7",L_FLAG+12,3*64); e(f"s_setprio {OPT['bprio']}")
    conv7()
    e("s_setprio 3"); y_publish(True)
    stamp("conv_done7")
    e("L_B_sig:")
    y_signal()
    e(f"s_branch L_B_fin\nL_B_plain:")
    wo_prefetch()
    e(f"L_B_fin:\ns_mov_b32 s{sSpin}, 0")
    service(True)
    e(f"s_cmp_eq_u32 {S(sConv)}, 0\ns_cbranch_scc1 L_B_wo")
    lds_spin("L_spin8",L_FLAG+8,4)
    e("L_B_wo:")
    wo_patterns(161)
    stamp("wo_go")
    lds=lambda st: (L_R[0]+5120*st if st<4 else RG[0]+5120*(st-4) if st<10 else L_R[0]+20480+5120*(st-10) if st<14 else RG[0]+30720 if st==14 else RG[1]+5120*(st-15))
    for k,steps in enumerate(([4,5,6,7],[14,15,16,17],[8,9,18,19],[0,1,2,3],[10,11,12,13])):
        if k==3: lds_spin("L_spin9",L_FLAG+112+8,8)
        byq(78,steps); byq(79,[lds(x) for x in steps]); wo_piece(161,78,79)
    stamp("wo_issued")
    y_consume()
    stamp("seg3_done")
    e("s_barrier")
    if OPT['stamp']: e("s_waitcnt vmcnt(0)"); stamp("end"); stamp_dump()
    e("s_endpgm\nL_stage_all:")
    stage_all()
    e("s_setpc_b64 s[90:91]")
    e("L_codeend:")
def q_proj_patch():
    n0=len(L); q_proj()
    for i in range(n0,len(L)):
        if L[i].strip()=="s_barrier":
            L[i]="    s_waitcnt vmcnt(0)\n    s_barrier"; break
main()
L[:]=[y for x in L for y in x.split("\n")]
hdr=open("cdna_kernels/"+NAME+".s.ref").read().split("; Override launch")[0]
out=hdr+f"""; @launch grid=(256,1,1) block=(768,1,1) lds={LDS_SIZE}
.amdgcn_target "amdgcn-amd-amdhsa--gfx950"
.text
.globl {NAME}_kernel
.p2align 8
.type {NAME}_kernel,@function
{NAME}_kernel:
"""+"\n".join(L)+f"""
    s_endpgm
.section .rodata,"a"
.p2align 6
.amdhsa_kernel {NAME}_kernel
  .amdhsa_next_free_vgpr 168
  .amdhsa_next_free_sgpr 102
  .amdhsa_accum_offset 168
  .amdhsa_group_segment_fixed_size 0
  .amdhsa_kernarg_size 120
  .amdhsa_user_sgpr_count 2
  .amdhsa_user_sgpr_kernarg_segment_ptr 1
  .amdhsa_system_sgpr_workgroup_id_x 1
  .amdhsa_float_denorm_mode_32 3
.end_amdhsa_kernel
"""
path=sys.argv[1] if len(sys.argv)>1 else "cdna_kernels/"+NAME+".s"
open(path,"w").write(out)
errs=hz.check(L,"lin")
for a,b in [] : pass
for x in sorted(set(errs)): print("HAZARD",x)
if OPT['stamp']: open(path+".stamps","w").write("\n".join(STAMPS))
print("lines",len(L))
```
